```python
import torch

def _softmax(x, axis=-1):
    return torch.softmax(x, dim=axis)
def _gelu(x):
    return torch.nn.functional.gelu(x, approximate="tanh")
def _silu(x):
    return torch.nn.functional.silu(x)
def _sigmoid(x):
    return torch.sigmoid(x)
def _layernorm(x, axis=-1, eps=1e-5):
    m = x.mean(dim=axis, keepdim=True)
    v = x.var(dim=axis, keepdim=True, unbiased=False)
    return (x - m) / torch.sqrt(v + eps)
def _scatter_add(tgt, idx, src, axis=0):
    return tgt.clone().index_add_(axis, idx, src)
def _segment_sum(src, seg, n):
    out = torch.zeros((n,) + src.shape[1:], dtype=src.dtype)
    return out.index_add_(0, seg, src)
def _pad(x, pw):
    flat = tuple(v for pair in reversed(pw) for v in pair)
    return torch.nn.functional.pad(x, flat)

kernel_name = 'interleave_layers__linear_kernel_hedgehog__ssm_conv_h3__prompt'

def setup_inputs():

    _w = (lambda a: (lambda t: t.to(torch.bfloat16) if t.is_floating_point() else t)(torch.as_tensor(a)))
    def _A_setup():
        B, S, D, H = 1, 2048, 576, 32
        Dh = D // H
        return {
            "x": _w((lambda *s: torch.randn(*s, dtype=torch.bfloat16) * 0.05)(B, S, D)),
            "wqkv": _w((lambda *s: torch.randn(*s, dtype=torch.bfloat16) * 0.4)(D, 3 * D)),
            "w_phi": _w((lambda *s: torch.randn(*s, dtype=torch.bfloat16) * 0.4)(H, Dh, Dh) * (Dh ** -0.5)),
            "wo": _w((lambda *s: torch.randn(*s, dtype=torch.bfloat16) * 0.05)(D, D)),
        }
    _A_in = _A_setup()

    def _B_setup():
        B, S, D = 1, 2048, 576
        ks = 4
        return {
            "q": _w((lambda *s: torch.randn(*s, dtype=torch.bfloat16) * 0.05)(B, S, D)),
            "k": _w((lambda *s: torch.randn(*s, dtype=torch.bfloat16) * 0.8)(B, S, D)),
            "v": _w((lambda *s: torch.randn(*s, dtype=torch.bfloat16) * 0.8)(B, S, D)),
            "shift_k": _w((lambda *s: torch.randn(*s, dtype=torch.bfloat16) * 0.8)(D, ks) * 0.5),
            "ssm_k": _w((lambda *s: torch.randn(*s, dtype=torch.bfloat16) * 1.6)(D, S) * (1.0 / S ** 0.5)),
            "ssm_D": _w((lambda *s: torch.randn(*s, dtype=torch.bfloat16) * 0.8)(D)),
        }
    _B_in = _B_setup()

    return {
        "A_x": _A_in["x"],
        "A_wqkv": _A_in["wqkv"],
        "A_w_phi": _A_in["w_phi"],
        "A_wo": _A_in["wo"],
        "B_q": _B_in["q"],
        "B_k": _B_in["k"],
        "B_v": _B_in["v"],
        "B_shift_k": _B_in["shift_k"],
        "B_ssm_k": _B_in["ssm_k"],
        "B_ssm_D": _B_in["ssm_D"],
    }

def reference(A_x, A_wqkv, A_w_phi, A_wo, B_q, B_k, B_v, B_shift_k, B_ssm_k, B_ssm_D):
    def _A_ref(x, wqkv, w_phi, wo):
        B, S, D = x.shape
        H = 32; Dh = D // H
        qkv = (lambda x, *d: x.permute(*d))((x @ wqkv).reshape(B, S, 3, H, Dh), 2, 0, 3, 1, 4)
        q, k, v = qkv[0], qkv[1], qkv[2]
        pq = torch.einsum("bhsd,hdf->bhsf", q, w_phi)
        pk = torch.einsum("bhsd,hdf->bhsf", k, w_phi)
        phi_q = torch.concatenate([_softmax(pq, axis=-1), _softmax(-pq, axis=-1)], axis=-1)
        phi_k = torch.concatenate([_softmax(pk, axis=-1), _softmax(-pk, axis=-1)], axis=-1)
        kv = torch.einsum("bhsf,bhsd->bhfd", phi_k, v)
        z  = torch.einsum("bhsf->bhf", phi_k)
        num = torch.einsum("bhqf,bhfd->bhqd", phi_q, kv)
        den = torch.einsum("bhqf,bhf->bhq", phi_q, z)[..., None] + 1e-6
        o = num / den
        return (lambda x, *d: x.permute(*d))(o, 0, 2, 1, 3).reshape(B, S, D) @ wo

    def _B_ref(q, k, v, shift_k, ssm_k, ssm_D):
        B, S, D = q.shape
        ks = shift_k.shape[-1]
        k_pad = _pad(k, ((0, 0), (ks - 1, 0), (0, 0)))
        k_shift = torch.zeros_like(k)
        for t in range(ks):
            k_shift = k_shift + k_pad[:, t:t + S, :] * shift_k[:, ks - 1 - t][None, None, :]
        kv = k_shift * v
        L = 2 * S
        kv_pad = _pad(kv, ((0, 0), (0, S), (0, 0)))
        kf_pad = _pad(ssm_k, ((0, 0), (0, S)))
        kv_f = (lambda x, axes=(-2,-1): torch.fft.rfft2(x.float(), dim=axes))(kv_pad[:, None, :, :], axes=(1, 2))
        kf_f = (lambda x, axes=(-2,-1): torch.fft.rfft2(x.float(), dim=axes))(kf_pad[:, None, :], axes=(1, 2))
        kf_f = (lambda x, *d: x.permute(*d))(kf_f, 1, 2, 0)
        y_f = kv_f * kf_f[None, :, :, :]
        y = (lambda x, s, axes=(-2,-1): torch.fft.irfft2(x, s=s, dim=axes).to(torch.bfloat16))(y_f, (1, L), axes=(1, 2))[:, 0, :S, :]
        y = y + kv * ssm_D[None, None, :]
        return q * y

    x = A_x
    x = x + _A_ref(_layernorm(x, axis=-1), A_wqkv, A_w_phi, A_wo)
    x = x + _B_ref(_layernorm(x, axis=-1), B_k, B_v, B_shift_k, B_ssm_k, B_ssm_D)
    x = x + _A_ref(_layernorm(x, axis=-1), A_wqkv, A_w_phi, A_wo)
    x = x + _B_ref(_layernorm(x, axis=-1), B_k, B_v, B_shift_k, B_ssm_k, B_ssm_D)
    return x
```

```python
import re, copy

TRANS = ("v_exp_f32", "v_log_f32", "v_rcp_f32", "v_rsq_f32", "v_sqrt_f32", "v_sin_f32", "v_cos_f32", "v_rcp_iflag_f32")
_MOD_RE = re.compile(r"\b(op_sel_hi|op_sel|neg_lo|neg_hi|quad_perm):\[[^\]]*\]")
_REG_RE = re.compile(r"^-?(?:abs\(|\|)?([vas])(?:(\d+)|\[(\d+):(\d+)\])\)?\|?$")

def regs_of(tok):
    tok = tok.strip()
    if tok in ("vcc", "exec", "m0", "scc"):
        return [("x", tok)]
    if tok in ("vcc_lo", "vcc_hi"): return [("x", "vcc")]
    if tok in ("exec_lo", "exec_hi"): return [("x", "exec")]
    m = _REG_RE.match(tok)
    if not m: return []
    k = m.group(1)
    if m.group(2) is not None:
        return [(k, int(m.group(2)))]
    return [(k, i) for i in range(int(m.group(3)), int(m.group(4)) + 1)]

def V(a, n=1):
    return f"v{a}" if n == 1 else f"v[{a}:{a+n-1}]"
def A(a, n=1):
    return f"a{a}" if n == 1 else f"a[{a}:{a+n-1}]"
def Sg(a, n=1):
    return f"s{a}" if n == 1 else f"s[{a}:{a+n-1}]"

class Inst:
    __slots__ = ("text", "op", "ops", "rest", "kind", "reads", "writes", "passes", "srcc", "srcab", "isdpp", "lds_dma", "wide_store_data", "sgpr_reads_vmem")

def parse(text):
    t = text.split(";")[0].strip()
    sp = t.split(None, 1)
    op = sp[0]
    rest = sp[1] if len(sp) > 1 else ""
    mods = " ".join(m.group(0) for m in _MOD_RE.finditer(rest))
    rest2 = _MOD_RE.sub("", rest)
    parts = [p.strip() for p in rest2.split(",")] if rest2.strip() else []
    ops = []
    tail = ""
    for p in parts:
        w = p.split()
        ops.append(w[0] if w else "")
        tail += " " + " ".join(w[1:])
    tail += " " + mods
    I = Inst(); I.text = text; I.op = op; I.ops = ops; I.rest = tail
    I.reads = []; I.writes = []; I.passes = 0; I.srcc = []; I.srcab = []; I.isdpp = False; I.lds_dma = False; I.wide_store_data = []
    R = lambda i: regs_of(ops[i]) if i < len(ops) else []
    base = op.replace("_e32", "").replace("_e64", "").replace("_dpp", "").replace("_sdwa", "")
    if op.startswith("v_mfma"):
        I.kind = "mfma"
        I.passes = 8 if "32x32" in op else 4
        I.writes = R(0); I.srcab = R(1) + R(2); I.srcc = R(3); I.reads = I.srcab + I.srcc
    elif op.startswith("v_"):
        I.kind = "valu"
        I.isdpp = ("row_" in tail) or ("quad_perm" in tail) or ("wave_" in tail) or op.endswith("_dpp")
        if base.startswith("v_cmp"):
            I.writes = R(0); I.reads = R(1) + R(2)
            if base.startswith("v_cmpx"): I.writes = I.writes + [("x", "exec")]
        elif base in ("v_permlane16_swap_b32", "v_permlane32_swap_b32", "v_swap_b32"):
            I.writes = R(0) + R(1); I.reads = R(0) + R(1)
        elif base in ("v_add_co_u32", "v_sub_co_u32", "v_subrev_co_u32"):
            I.writes = R(0) + R(1); I.reads = R(2) + R(3)
        elif base in ("v_addc_co_u32", "v_subb_co_u32"):
            I.writes = R(0) + R(1); I.reads = R(2) + R(3) + R(4)
        else:
            I.writes = R(0)
            I.reads = sum((R(i) for i in range(1, len(ops))), [])
            if base in ("v_fmac_f32", "v_dot2c_f32_bf16", "v_pk_fmac_f16", "v_fmac_f16", "v_mac_f32", "v_writelane_b32") or I.isdpp or "dst_unused:UNUSED_PRESERVE" in tail:
                I.reads = I.reads + R(0)
            if base == "v_cndmask_b32" and len(ops) == 3:
                I.reads = I.reads + [("x", "vcc")]
    elif op.startswith("ds_"):
        I.kind = "ds"
        if op.startswith("ds_read") or op.startswith("ds_bpermute") or op.startswith("ds_permute") or op.startswith("ds_swizzle") or "_rtn" in op:
            I.writes = R(0); I.reads = sum((R(i) for i in range(1, len(ops))), [])
        else:
            I.reads = sum((R(i) for i in range(len(ops))), [])
    elif op.startswith("buffer_") or op.startswith("global_"):
        I.kind = "vmem"
        islds = bool(re.search(r"\blds\b", tail)) or "load_lds" in op
        if op in ("buffer_wbl2", "buffer_inv"):
            pass
        elif islds:
            I.lds_dma = True
            I.reads = sum((R(i) for i in range(len(ops))), []) + [("x", "m0")]
        elif "_load" in op:
            I.writes = R(0); I.reads = sum((R(i) for i in range(1, len(ops))), [])
            if "d16" in op: I.reads = I.reads
        elif "atomic" in op and re.search(r"\bsc0\b", tail):
            if op.startswith("buffer_"):
                I.writes = R(0); I.reads = sum((R(i) for i in range(len(ops))), [])
            else:
                I.writes = R(0); I.reads = sum((R(i) for i in range(1, len(ops))), [])
        else:
            I.reads = sum((R(i) for i in range(len(ops))), [])
            if "x3" in op or "x4" in op:
                I.wide_store_data = R(0) if op.startswith("buffer_") else R(1)
    elif op.startswith("s_load") or op.startswith("s_buffer_load") or op in ("s_memtime", "s_memrealtime"):
        I.kind = "smem"
        I.writes = R(0); I.reads = sum((R(i) for i in range(1, len(ops))), [])
    elif op.startswith("s_"):
        I.kind = "salu"
        if op in ("s_waitcnt", "s_barrier", "s_nop", "s_endpgm", "s_branch", "s_sleep", "s_setprio") or op.startswith("s_cbranch"):
            I.kind = "ctl"
        elif op.startswith("s_cmp") or op.startswith("s_bitcmp"):
            I.reads = R(0) + R(1); I.writes = [("x", "scc")]
        else:
            I.writes = R(0); I.reads = sum((R(i) for i in range(1, len(ops))), [])
            if "saveexec" in op:
                I.writes = I.writes + [("x", "exec")]; I.reads = I.reads + [("x", "exec")]
            if op in ("s_addk_i32", "s_mulk_i32"): I.reads = I.reads + R(0)
    else:
        raise ValueError("unknown instr: " + text)
    return I

class Kern:
    def __init__(self, name):
        self.name = name
        self.out = []
        self.pos = 0
        self.w = {}
        self.crd = {}
        self.std = {}
        self.vm = []
        self.lg = []
        self.nins = 0
        self.maxv = -1; self.maxa = -1; self.maxs = -1
    def raw(self, s): self.out.append(s)
    def c(self, s): self.out.append("    ; " + s)
    def label(self, l): self.out.append(l + ":")
    def _emit(self, text, ws=1):
        self.out.append("    " + text); self.pos += ws; self.nins += 1
    def nop(self, n):
        while n > 0:
            k = min(n, 16); self._emit(f"s_nop {k-1}", k); n -= k
    def wait(self, vm=None, lg=None):
        parts = []
        if vm is not None:
            vm = max(0, vm)
            if vm < len(self.vm):
                if vm <= 62: parts.append(f"vmcnt({vm})")
                self.vm = self.vm[len(self.vm) - vm:] if vm else []
        if lg is not None:
            lg = max(0, lg)
            if lg < len(self.lg):
                if any(s for _, s in self.lg): lg = 0
                if lg <= 14: parts.append(f"lgkmcnt({lg})")
                self.lg = self.lg[len(self.lg) - lg:] if lg else []
        if parts: self._emit("s_waitcnt " + " ".join(parts))
    def wait_force(self, vm=None, lg=None):
        parts = []
        if vm is not None:
            parts.append(f"vmcnt({vm})"); self.vm = self.vm[len(self.vm) - vm:] if 0 < vm < len(self.vm) else ([] if vm == 0 else self.vm)
        if lg is not None:
            parts.append(f"lgkmcnt({lg})"); self.lg = self.lg[len(self.lg) - lg:] if 0 < lg < len(self.lg) else ([] if lg == 0 else self.lg)
        self._emit("s_waitcnt " + " ".join(parts))
    def wait_tag(self, tag):
        idx = [i for i, (_, t) in enumerate(self.vm) if t == tag]
        if idx: self.wait(vm=len(self.vm) - 1 - idx[-1])
    def barrier(self, lg=True):
        if lg: self.wait(lg=0)
        self._emit("s_barrier")
    def i(self, text, tag=None):
        I = parse(text)
        touched = set(I.reads) | set(I.writes)
        for (k, n) in touched:
            if k == "v": self.maxv = max(self.maxv, n)
            elif k == "a": self.maxa = max(self.maxa, n)
            elif k == "s": self.maxs = max(self.maxs, n)
        needvm = None; needlg = None
        d16 = I.kind == "vmem" and "d16" in I.op
        for idx, (dest, _) in enumerate(self.vm):
            chk = set(I.reads) if d16 else touched
            if dest & chk: needvm = len(self.vm) - 1 - idx
        for idx, (dest, _) in enumerate(self.lg):
            if dest & touched: needlg = len(self.lg) - 1 - idx
        if needvm is not None or needlg is not None:
            self.wait(vm=needvm, lg=needlg)
        need = self.pos
        def req(p, ws):
            nonlocal need
            need = max(need, p + 1 + ws)
        isvalu = I.kind == "valu"
        base = I.op.replace("_e32", "").replace("_e64", "")
        for r in I.reads:
            wr = self.w.get(r)
            if not wr: continue
            k, p, info = wr
            if k == "mfma":
                if I.kind == "mfma":
                    if r in I.srcab: req(p, 8 if info[0] == 4 else 12)
                    if r in I.srcc:
                        if tuple(I.srcc) == info[1] and I.passes == info[0]: pass
                        else: req(p, info[0] + 2)
                elif I.kind in ("valu", "vmem", "ds"): req(p, 8 if info[0] == 4 else 12)
            elif k == "valu":
                if r[0] in ("v", "a"):
                    if I.kind == "mfma": req(p, 2)
                    if isvalu:
                        if base in ("v_readfirstlane_b32", "v_readlane_b32"): req(p, 1)
                        if I.isdpp: req(p, 2)
                        if base.startswith("v_permlane"): req(p, 2)
                        if info == "trans" and base not in TRANS: req(p, 1)
                        if info == "opsel": req(p, 1)
                    if info == "dot":
                        pass
                else:
                    if isvalu: req(p, 4 if base in ("v_readlane_b32", "v_writelane_b32") else 2)
                    if I.kind == "vmem": req(p, 5)
                    if I.kind == "mfma": req(p, 4)
            elif k == "dot":
                same = (I.op == info) and (r in regs_of(I.ops[-1]) or r in I.writes) and r not in (regs_of(I.ops[1]) + regs_of(I.ops[2]))
                if not same and I.kind in ("valu", "mfma", "vmem", "ds"): req(p, 3)
            elif k == "salu":
                if r == ("x", "m0") and (I.lds_dma or "addtid" in I.op): req(p, 1)
        for r in I.writes:
            wr = self.w.get(r)
            if wr:
                k, p, info = wr
                if k == "mfma":
                    if I.kind == "mfma":
                        if not (tuple(I.writes) == info[1] and I.passes == info[0]): req(p, info[0] + 2)
                    else: req(p, 8 if info[0] == 4 else 12)
                if k == "dot" and I.op != info: req(p, 3)
            if isvalu or I.kind in ("vmem", "ds"):
                cr = self.crd.get(r)
                if cr: req(cr[1], 3 if cr[0] == 4 else 7)
            st = self.std.get(r)
            if st is not None: req(st, 2 if isvalu or I.kind == "mfma" else 1)
        if I.kind == "mfma":
            ex = self.w.get(("x", "exec"))
            if ex and ex[0] == "valu": req(ex[1], 4)
        if need > self.pos: self.nop(need - self.pos)
        p = self.pos
        if I.op == "s_nop": self._emit(text, int(I.ops[0], 0) + 1)
        else: self._emit(text)
        for r in I.writes:
            if I.kind == "mfma": self.w[r] = ("mfma", p, (I.passes, tuple(I.writes)))
            elif isvalu:
                if base.startswith("v_dot"): self.w[r] = ("dot", p, I.op)
                else:
                    info = "trans" if base in TRANS else ("opsel" if ("dst_sel" in I.rest or "op_sel:" in I.rest and not base.startswith("v_pk")) else None)
                    self.w[r] = ("valu", p, info)
            elif I.kind == "salu": self.w[r] = ("salu", p, None)
            else: self.w.pop(r, None)
        if I.kind == "mfma":
            for r in I.srcc: self.crd[r] = (I.passes, p)
        for r in I.wide_store_data: self.std[r] = p
        if I.kind == "vmem": self.vm.append((frozenset(I.writes), tag))
        elif I.kind == "ds": self.lg.append((frozenset(I.writes), False))
        elif I.kind == "smem": self.lg.append((frozenset(I.writes), True))
        elif I.op == "s_waitcnt": raise ValueError("use wait()")
    def __call__(self, text, tag=None):
        for t in text.strip().split("\n"):
            t = t.strip()
            if t: self.i(t, tag)
    def hazard_flush(self):
        need = self.pos
        for r, (k, p, info) in self.w.items():
            ws = {"mfma": 12, "valu": 5, "dot": 3, "salu": 1}.get(k, 0)
            if k == "mfma": ws = 8 if info[0] == 4 else 12
            need = max(need, p + 1 + ws)
        for r, (ps, p) in self.crd.items(): need = max(need, p + 1 + (3 if ps == 4 else 7))
        for r, p in self.std.items(): need = max(need, p + 3)
        if need > self.pos: self.nop(need - self.pos)
    def save(self):
        return copy.deepcopy((self.pos, self.w, self.crd, self.std, self.vm, self.lg))
    def restore(self, st):
        self.pos, self.w, self.crd, self.std, self.vm, self.lg = copy.deepcopy(st)
    def restore_mem(self, st):
        self.vm, self.lg = copy.deepcopy(st[4]), copy.deepcopy(st[5])
    def text(self):
        return "\n".join([f".globl {self.name}", ".p2align 8", f".type {self.name},@function", f"{self.name}:"] + self.out) + "\n"
    def desc(self, force_acc=None):
        nv = self.maxv + 1
        acc = max(4, (nv + 3) // 4 * 4)
        if force_acc: acc = force_acc
        tot = acc + self.maxa + 1 if self.maxa >= 0 else nv
        return "\n".join([".p2align 6", f".amdhsa_kernel {self.name}", f"  .amdhsa_next_free_vgpr {tot}", f"  .amdhsa_next_free_sgpr {max(self.maxs + 1, 16)}",
            f"  .amdhsa_accum_offset {acc}", "  .amdhsa_group_segment_fixed_size 0", "  .amdhsa_kernarg_size 104", "  .amdhsa_user_sgpr_count 2",
            "  .amdhsa_user_sgpr_kernarg_segment_ptr 1", "  .amdhsa_system_sgpr_workgroup_id_x 1",
            "  .amdhsa_float_denorm_mode_32 3", "  .amdhsa_float_denorm_mode_16_64 3", ".end_amdhsa_kernel"]) + "\n"
```

```python
from asmgen import *
from layout import *

NB, NA, NC, ND, NE = 96, 144, 54, 96, 8
K0_GRID = NB + NA + NC + ND + NE
K0_LDS = 59904

def srd(k, dst, lo, size):
    k(f"s_mov_b32 s{dst}, s{lo}\ns_mov_b32 s{dst+1}, s{lo+1}\ns_mov_b32 s{dst+2}, {size}\ns_mov_b32 s{dst+3}, 0x20000")

def gen_k0():
    k = Kern("k0_kernel")
    k(f"s_cmp_ge_u32 s2, {K0_GRID}")
    k.i("s_cbranch_scc1 K0_END")
    k("s_load_dwordx8 s[16:23], s[0:1], 0\ns_load_dwordx8 s[24:31], s[0:1], 32\ns_load_dwordx2 s[32:33], s[0:1], 96")
    k("v_and_b32 v1, 63, v0\nv_lshrrev_b32 v2, 6, v0")
    k("v_readfirstlane_b32 s3, v2")
    k("v_and_b32 v3, 15, v0\nv_bfe_u32 v4, v0, 4, 2")
    srd(k, 8, 32, WS_SIZE)
    srd(k, 36, 16, XBYTES)
    srd(k, 40, 18, 576 * 1728 * 2)
    srd(k, 44, 20, 32 * 324 * 2)
    srd(k, 48, 22, 576 * 576 * 2)
    srd(k, 52, 26, XBYTES)
    srd(k, 56, 28, XBYTES)
    srd(k, 60, 30, 576 * 4 * 2)
    k.hazard_flush()
    st = k.save()
    k(f"s_cmp_ge_u32 s2, {NB+NA+NC+ND}"); k.i("s_cbranch_scc1 K0_E")
    k(f"s_cmp_ge_u32 s2, {NB+NA+NC}"); k.i("s_cbranch_scc1 K0_D")
    k(f"s_cmp_ge_u32 s2, {NB+NA}"); k.i("s_cbranch_scc1 K0_C")
    k(f"s_cmp_ge_u32 s2, {NB}"); k.i("s_cbranch_scc1 K0_A")

    k.c("role B")
    RAW, T = 0, 23056
    k("s_mov_b32 s4, 0x2aaaaaab\ns_mul_hi_u32 s5, s2, s4")
    k("s_mul_i32 s6, s5, 6\ns_sub_u32 s6, s2, s6")
    k("v_mul_u32_u24 v5, 4370, v1\nv_lshrrev_b32 v5, 16, v5")
    k("v_mul_u32_u24 v6, 15, v5\nv_sub_u32 v6, v1, v6")
    k("v_mul_u32_u24 v7, 13108, v6\nv_lshrrev_b32 v7, 16, v7")
    k("v_mul_u32_u24 v8, 5, v7\nv_sub_u32 v8, v6, v8")
    k("v_mul_u32_u24 v5, 3456, v5\nv_mul_u32_u24 v7, 1152, v7\nv_lshlrev_b32 v8, 4, v8\nv_add3_u32 v5, v5, v7, v8")
    k("s_mul_i32 s7, s6, 96\ns_mul_i32 s12, s3, 24\ns_add_u32 s7, s7, s12\ns_mul_i32 s7, s7, 3456\ns_mul_i32 s12, s5, 72\ns_add_u32 s7, s7, s12")
    k("s_mul_i32 s12, s3, 5760")
    k("s_mov_b64 exec, 0x0fffffffffffffff" if False else "s_mov_b32 exec_hi, 0x0fffffff")
    for i in range(6):
        k("s_mov_b32 m0, s12")
        k("buffer_load_dwordx4 v5, s[40:43], s7 offen lds", tag="raw")
        if i < 5: k("s_add_u32 s7, s7, 13824\ns_add_u32 s12, s12, 960")
    k("s_mov_b32 exec_hi, -1")
    k("s_mul_i32 s13, s5, 1296\nv_lshlrev_b32 v9, 1, v0")
    for i in range(3):
        k(f"buffer_load_ushort v{10+i}, v9, s[44:47], s13 offen offset:{512*i}")
    k("v_mov_b32 v16, 0\nv_mov_b32 v17, 0\nv_mov_b32 v18, 0\nv_mov_b32 v19, 0\nv_lshlrev_b32 v14, 4, v0")
    for i in range(9):
        k(f"ds_write_b128 v14, v[16:19] offset:{23040 + 4096*i}")
    for i in range(3):
        e, hh, rem, d, f, ad = 20, 21, 22, 23, 24, 26 + i
        k(f"v_add_u32 v{e}, {256*i}, v0")
        k(f"v_cmp_le_u32 vcc, 324, v{e}")
        k(f"v_cndmask_b32 v{hh}, 0, 1, vcc")
        k(f"v_mul_u32_u24 v{rem}, 324, v{hh}\nv_sub_u32 v{rem}, v{e}, v{rem}")
        k(f"v_mul_u32_u24 v{d}, 3641, v{rem}\nv_lshrrev_b32 v{d}, 16, v{d}")
        k(f"v_mul_u32_u24 v{f}, 18, v{d}\nv_sub_u32 v{f}, v{rem}, v{f}")
        k(f"v_lshrrev_b32 v25, 2, v{f}\nv_lshlrev_b32 v25, 4, v25\nv_and_b32 v{f}, 3, v{f}\nv_add_u32 v25, v25, v{f}\nv_lshl_add_u32 v25, v{hh}, 3, v25")
        k(f"v_mul_u32_u24 v25, 272, v25")
        k(f"v_mul_u32_u24 v{hh}, 18, v{hh}\nv_add_u32 v{hh}, v{hh}, v{d}\nv_lshl_add_u32 v{ad}, v{hh}, 1, v25")
    k("v_cmp_le_u32 vcc, 18, v0\nv_cndmask_b32 v21, 0, 1, vcc\nv_mul_u32_u24 v22, 18, v21\nv_sub_u32 v22, v0, v22")
    k("v_cmp_le_u32 vcc, 9, v22\nv_cndmask_b32 v23, 0, 1, vcc\nv_mul_u32_u24 v24, 9, v23\nv_sub_u32 v24, v22, v24\nv_add_u32 v24, 18, v24")
    k("v_lshl_add_u32 v23, v21, 1, v23")
    k("v_lshrrev_b32 v25, 2, v24\nv_lshlrev_b32 v25, 4, v25\nv_and_b32 v24, 3, v24\nv_add_u32 v25, v25, v24\nv_lshl_add_u32 v25, v23, 2, v25")
    k("v_mul_u32_u24 v25, 272, v25\nv_lshl_add_u32 v29, v0, 1, v25\nv_mov_b32 v30, 0x3f80")
    k.barrier()
    for i in range(3):
        if i == 2:
            k("v_cmp_gt_u32 vcc, 136, v0\ns_and_saveexec_b64 s[14:15], vcc")
        k(f"ds_write_b16 v{26+i}, v{10+i} offset:{T}\nds_write_b16 v{26+i}, v{10+i} offset:{T + 4*272 + 80}")
    k("s_mov_b64 exec, s[14:15]")
    k("v_cmp_gt_u32 vcc, 36, v0\ns_and_saveexec_b64 s[14:15], vcc")
    k(f"ds_write_b16 v29, v30 offset:{T + 160}")
    k("s_mov_b64 exec, s[14:15]")
    k.wait(vm=0)
    k.barrier()
    k("s_lshl_b32 s12, s3, 5\nv_add_u32 v14, s12, v3\nv_mul_u32_u24 v14, 272, v14\nv_lshl_add_u32 v14, v4, 4, v14")
    for tt in range(2):
        for t in range(4):
            k(f"ds_read_b128 v[{32+16*tt+4*t}:{35+16*tt+4*t}], v14 offset:{T + tt*4352 + t*64}")
    k("v_lshrrev_b32 v15, 2, v3\nv_lshlrev_b32 v15, 3, v15\nv_and_b32 v20, 3, v3\nv_add_u32 v15, v15, v20\nv_mul_u32_u24 v15, 240, v15\nv_lshl_add_u32 v15, v4, 4, v15")
    for r in range(64, 68): k(f"v_mov_b32 v{r}, 0x3f803f80")
    for r in range(68, 76): k(f"v_mov_b32 v{r}, 0")
    k("v_cmp_eq_u32 vcc, 3, v20\ns_cmp_eq_u32 s3, 3\ns_cselect_b64 s[34:35], vcc, 0")
    k(f"s_mul_i32 s7, s5, {WQ_HP}\ns_mul_i32 s12, s6, 21504\ns_add_u32 s7, s7, s12\ns_lshl_b32 s12, s3, 11\ns_add_u32 s7, s7, s12")
    k("s_add_u32 s13, s7, 1024\ns_cmp_eq_u32 s3, 3\ns_cselect_b32 s13, 0x7ff00000, s13")
    k("v_lshlrev_b32 v21, 4, v1")
    for ks in range(3):
        for hf in range(2):
            ab = 80 + 16 * hf
            for t in range(4):
                k(f"ds_read_b128 v[{ab+4*t}:{ab+4*t+3}], v15 offset:{(32*ks+4*hf)*240 + 64*t}")
        for hf in range(2):
            ab = 80 + 16 * hf
            for tt in range(2):
                acc = 112 + 8 * tt + 4 * hf
                for t in range(4):
                    c = "0" if t == 0 else V(acc, 4)
                    k(f"v_mfma_f32_16x16x32_bf16 {V(acc,4)}, {V(ab+4*t,4)}, {V(32+16*tt+4*t,4)}, {c}")
        for tt in range(2):
            acc = 112 + 8 * tt; o = 128 + 4 * tt
            for q in range(4):
                k(f"v_cvt_pk_bf16_f32 v{o+q}, v{acc+2*q}, v{acc+2*q+1}")
            if tt == 0:
                for q in range(4): k(f"v_cndmask_b32 v{o+q}, v{o+q}, v64, s[34:35]")
            k(f"v_mfma_f32_16x16x32_bf16 {V(68+4*tt,4)}, {V(64,4)}, {V(o,4)}, {V(68+4*tt,4)}")
            k(f"buffer_store_dwordx4 {V(o,4)}, v21, s[8:11], s{7 if tt == 0 else 13} offen")
        if ks < 2: k("s_add_u32 s7, s7, 7168\ns_add_u32 s13, s13, 7168")
    k(f"s_mul_i32 s7, s2, 448\ns_lshl_b32 s12, s3, 7\ns_add_u32 s7, s7, s12\ns_add_u32 s7, s7, {OFF_CS}")
    k("s_add_u32 s13, s7, 64\ns_cmp_eq_u32 s3, 3\ns_cselect_b32 s13, 0x7ff00000, s13")
    k("v_lshlrev_b32 v21, 2, v1\ns_mov_b64 exec, 0xffff")
    k("buffer_store_dword v68, v21, s[8:11], s7 offen\nbuffer_store_dword v72, v21, s[8:11], s13 offen")
    k.i("s_endpgm")

    k.label("K0_A"); k.restore(st)
    k(f"s_sub_u32 s4, s2, {NB}\ns_mov_b32 s5, 0x1c71c71d\ns_mul_hi_u32 s5, s4, s5")
    k("s_mul_i32 s6, s5, 9\ns_sub_u32 s6, s4, s6")
    k("v_and_b32 v5, 7, v1\nv_lshrrev_b32 v6, 3, v0")
    k("s_lshl_b32 s7, s5, 7\nv_lshlrev_b32 v7, 2, v6\nv_add_u32 v7, s7, v7\nv_mul_u32_u24 v7, 1152, v7")
    k("s_lshl_b32 s12, s6, 7\nv_lshlrev_b32 v8, 4, v5\nv_add3_u32 v7, v7, v8, s12")
    k("v_subrev_u32 v9, 3456, v7")
    KR = 16
    for j in range(3): k(f"buffer_load_dwordx4 {V(KR+4*j,4)}, v9, s[52:55], 0 offen offset:{1152*j}")
    for j in range(4): k(f"buffer_load_dwordx4 {V(KR+12+4*j,4)}, v7, s[52:55], 0 offen offset:{1152*j}")
    k("s_lshl_b32 s12, s6, 9\nv_lshlrev_b32 v10, 6, v5")
    for j in range(4): k(f"buffer_load_dwordx4 {V(60+4*j,4)}, v10, s[60:63], s12 offen offset:{16*j}")
    for j in range(4): k(f"buffer_load_dwordx4 {V(44+4*j,4)}, v7, s[56:59], 0 offen offset:{1152*j}")
    k("v_sub_u32 v11, 31, v6\nv_lshrrev_b32 v12, 1, v11\nv_xor_b32 v12, v12, v5\nv_lshlrev_b32 v12, 4, v12\nv_and_b32 v11, 1, v11\nv_lshl_add_u32 v12, v11, 3, v12")
    k("v_lshl_add_u32 v12, v5, 11, v12")
    k("s_mov_b32 s13, 0xffff0000")
    for c in range(8):
        k(f"v_lshlrev_b32 v{80+c}, 16, v{60+2*c}\nv_and_b32 v{88+c}, s13, v{60+2*c}\nv_lshlrev_b32 v{96+c}, 16, v{61+2*c}\nv_and_b32 v{104+c}, s13, v{61+2*c}")
    for r in range(7):
        for q in range(4):
            k(f"v_lshlrev_b32 v{112+8*r+2*q}, 16, v{KR+4*r+q}\nv_and_b32 v{113+8*r+2*q}, s13, v{KR+4*r+q}")
    for t in range(4):
        for q in range(4):
            o = V(168+8*t+2*q, 2)
            k(f"v_pk_mul_f32 {o}, {V(112+8*(t)+2*q,2)}, {V(104+2*q,2)}")
            for lag in (2, 1, 0):
                k(f"v_pk_fma_f32 {o}, {V(112+8*(3+t-lag)+2*q,2)}, {V(80+8*lag+2*q,2)}, {o}")
    for t in range(4):
        for q in range(4):
            k(f"v_lshlrev_b32 v{112+8*t+2*q}, 16, v{44+4*t+q}\nv_and_b32 v{113+8*t+2*q}, s13, v{44+4*t+q}")
    for t in range(4):
        for q in range(4):
            o = V(168+8*t+2*q, 2)
            k(f"v_pk_mul_f32 {o}, {o}, {V(112+8*t+2*q,2)}")
    for c in range(8):
        k(f"v_cvt_pk_bf16_f32 v{16+2*c}, v{168+24+c}, v{168+16+c}\nv_cvt_pk_bf16_f32 v{17+2*c}, v{168+8+c}, v{168+c}")
        k(f"ds_write_b64 v12, {V(16+2*c,2)} offset:{256*c}")
    k.barrier()
    k("s_lshl_b32 s12, s3, 1\nv_xor_b32 v13, s12, v3\ns_add_u32 s12, s12, 1\nv_xor_b32 v14, s12, v3")
    k("s_lshl_b32 s12, s3, 12\nv_lshlrev_b32 v15, 8, v4\nv_add_u32 v15, s12, v15")
    k("v_lshl_add_u32 v13, v13, 4, v15\nv_lshl_add_u32 v14, v14, 4, v15")
    for i in range(4):
        k(f"ds_read_b128 {V(32+4*i,4)}, v{13 if i < 2 else 14} offset:{1024*i}")
    k("v_lshlrev_b32 v15, 12, v4\nv_lshl_add_u32 v15, v3, 4, v15")
    k(f"s_lshl_b32 s12, s6, 18\ns_lshl_b32 s13, s3, 16\ns_add_u32 s12, s12, s13\ns_lshl_b32 s13, s5, 8\ns_sub_u32 s12, s12, s13\ns_add_u32 s12, s12, {OFF_UT + 3840}")
    for i in range(4):
        k(f"buffer_store_dwordx4 {V(32+4*i,4)}, v15, s[8:11], s12 offen")
        if i < 3: k("s_add_u32 s12, s12, 16384")
    k.i("s_endpgm")

    k.label("K0_C"); k.restore(st)
    k(f"s_sub_u32 s4, s2, {NB+NA}\ns_mov_b32 s5, 0x55555556\ns_mul_hi_u32 s5, s4, s5")
    k("s_mul_i32 s6, s5, 3\ns_sub_u32 s6, s4, s6")
    k("s_lshl_b32 s7, s5, 2\nv_add_u32 v5, s7, v4")
    k("v_mul_u32_u24 v6, 3641, v5\nv_lshrrev_b32 v6, 16, v6")
    k("v_mul_u32_u24 v7, 18, v6\nv_sub_u32 v7, v5, v7")
    k("v_cmp_le_u32 vcc, 9, v7\nv_cndmask_b32 v8, 0, 9, vcc\nv_sub_u32 v7, v7, v8")
    k("v_mul_u32_u24 v6, 144, v6\nv_add_u32 v6, v6, v8")
    for j in range(8):
        k(f"v_lshlrev_b32 v9, 3, v7\nv_add_u32 v9, {j}, v9")
        k("v_mul_u32_u24 v10, 7282, v9\nv_lshrrev_b32 v10, 16, v10")
        k("v_mul_u32_u24 v10, 9, v10\nv_add3_u32 v9, v9, v10, v6")
        k(f"v_mul_u32_u24 v9, 1152, v9\nv_lshl_add_u32 v{16+j}, v3, 1, v9")
    k("s_mul_i32 s7, s6, 12\ns_mul_i32 s12, s3, 3\ns_add_u32 s7, s7, s12")
    k("s_lshl_b32 s12, s7, 5")
    for i in range(3):
        for j in range(8):
            k(f"buffer_load_ushort v{48+8*i+j}, v{16+j}, s[48:51], s12 offen offset:{32*i}")
    k(f"s_mul_i32 s7, s7, 18\ns_add_u32 s7, s7, s5\ns_lshl_b32 s7, s7, 10\ns_add_u32 s7, s7, {OFF_WO}\nv_lshlrev_b32 v5, 4, v1")
    for i in range(3):
        for q in range(4): k(f"v_lshl_or_b32 v{32+4*i+q}, v{48+8*i+2*q+1}, 16, v{48+8*i+2*q}")
        k(f"buffer_store_dwordx4 {V(32+4*i,4)}, v5, s[8:11], s7 offen")
        if i < 2: k("s_add_u32 s7, s7, 18432")
    k.i("s_endpgm")

    k.label("K0_D"); k.restore(st)
    k(f"s_sub_u32 s4, s2, {NB+NA+NC}\ns_lshl_b32 s4, s4, 2\ns_add_u32 s4, s4, s3\ns_mov_b32 s5, 0x55555556\ns_mul_hi_u32 s5, s4, s5")
    k("s_mul_i32 s6, s5, 3\ns_sub_u32 s6, s4, s6\ns_mul_i32 s6, s6, 6")
    k("v_lshrrev_b32 v5, 2, v1\nv_and_b32 v6, 3, v1\nv_mul_u32_u24 v7, 1152, v5\nv_lshl_add_u32 v7, v6, 4, v7")
    k("s_mul_i32 s7, s5, 18432\ns_lshl_b32 s12, s6, 6\ns_add_u32 s7, s7, s12")
    for i in range(6): k(f"buffer_load_dwordx4 {V(16+4*i,4)}, v7, s[36:39], s7 offen offset:{64*i}")
    k("s_mul_i32 s12, s3, 6528\nv_mul_u32_u24 v8, 272, v6\nv_lshl_add_u32 v8, v5, 4, v8\nv_add_u32 v8, s12, v8")
    k("v_mul_u32_u24 v9, 272, v4\nv_lshl_add_u32 v9, v3, 4, v9\nv_add_u32 v9, s12, v9")
    for i in range(6): k(f"ds_write_b128 v8, {V(16+4*i,4)} offset:{1088*i}")
    for i in range(6): k(f"ds_read_b128 {V(40+4*i,4)}, v9 offset:{1088*i}")
    k(f"s_mul_i32 s7, s5, 18\ns_add_u32 s7, s7, s6\ns_lshl_b32 s7, s7, 10\ns_add_u32 s7, s7, {OFF_XF0}\ns_add_u32 s12, s7, 4096\nv_lshlrev_b32 v5, 4, v1")
    for i in range(6):
        k(f"buffer_store_dwordx4 {V(40+4*i,4)}, v5, s[8:11], s{7 if i < 4 else 12} offen offset:{1024*(i%4)}")
    k.i("s_endpgm")

    k.label("K0_E"); k.restore(st)
    k(f"s_sub_u32 s4, s2, {NB+NA+NC+ND}\ns_lshl_b32 s4, s4, 2\ns_add_u32 s4, s4, s3")
    for r in range(16, 20): k(f"v_mov_b32 v{r}, 0")
    for r in range(20, 24): k(f"v_mov_b32 v{r}, -1")
    k(f"v_lshlrev_b32 v5, 4, v1\ns_mul_i32 s7, s4, 6144\ns_add_u32 s7, s7, {OFF_KV}\ns_add_u32 s12, s7, 4096")
    for i in range(6): k(f"buffer_store_dwordx4 v[16:19], v5, s[8:11], s{7 if i < 4 else 12} offen offset:{1024*(i%4)}")
    k(f"s_lshl_b32 s7, s4, 12\ns_add_u32 s7, s7, {OFF_ST}")
    for i in range(4): k(f"buffer_store_dwordx4 v[20:23], v5, s[8:11], s7 offen offset:{1024*i}")
    k.label("K0_END")
    k.i("s_endpgm")
    return k
```

```python
from asmgen import *
from layout import *
from k0 import srd

K1_LDS = 162816
PHK, VIMG, CSL = 129024, 149504, 161792
CONVB, CONVW = 86016, 21248
LOG2E = 0x3fb8aa3b
XF = lambda nt, s: 16 + (2 * s + nt) * 4
ACC = lambda nt, mt: 160 + (nt * 7 + mt) * 4

def gen_qkv(name, xoff, kvoff, conv, stamp=None):
    k = Kern(name)
    L = name.upper()
    k("s_cmp_ge_u32 s2, 256")
    k.i(f"s_cbranch_scc1 {L}_END")
    k("s_load_dwordx2 s[16:17], s[0:1], 96")
    if conv: k("s_load_dwordx4 s[24:27], s[0:1], 64")
    k("v_and_b32 v1, 63, v0\nv_lshrrev_b32 v5, 6, v0\nv_lshlrev_b32 v2, 4, v1")
    k("v_readfirstlane_b32 s3, v5")
    k("v_and_b32 v3, 15, v0\nv_bfe_u32 v4, v0, 4, 2")
    k("s_and_b32 s4, s2, 7\ns_lshr_b32 s5, s2, 3")
    k("s_lshr_b32 s20, s4, 1\ns_lshl_b32 s20, s20, 2\ns_lshr_b32 s6, s5, 3\ns_add_u32 s20, s20, s6")
    k("s_and_b32 s21, s4, 1\ns_lshl_b32 s21, s21, 3\ns_and_b32 s6, s5, 7\ns_add_u32 s21, s21, s6")
    k(f"s_lshl_b32 s6, s20, 3\ns_lshl_b32 s7, s3, 1\ns_add_u32 s6, s6, s7\ns_mul_i32 s22, s6, 18432\ns_add_u32 s22, s22, {xoff}\ns_add_u32 s23, s22, 18432")
    k(f"s_mul_i32 s29, s3, 5376\ns_mul_i32 s28, s21, {WQ_HP}\ns_add_u32 s28, s28, s29")
    srd(k, 8, 16, WS_SIZE)
    if conv: srd(k, 12, 24, 576 * 4096)
    k(f"s_mul_i32 s6, s21, 2688\ns_add_u32 s6, s6, {OFF_CS}\nv_lshlrev_b32 v5, 2, v0")

    def cs_loads():
        for p in range(6): k(f"buffer_load_dword v{232+p}, v5, s[8:11], s6 offen offset:{448*p}")
    def w_loads(st):
        def mk(i):
            def f():
                if i == 0: k(f"s_add_u32 s30, s29, {st*21504}\ns_add_u32 s31, s28, {st*21504 + OFF_WQ}\ns_mov_b32 m0, s30")
                if i == 4: k("s_add_u32 s30, s30, 4096\ns_add_u32 s31, s31, 4096\ns_mov_b32 m0, s30")
                if i == 5: k("s_mov_b64 exec, 0xffff")
                k(f"buffer_load_dwordx4 v2, s[8:11], s31 offen offset:{1024*(i%4)} lds", tag=f"w{st}")
                if i == 5: k("s_mov_b64 exec, -1")
            return f
        return [mk(i) for i in range(6)]
    def x_loads(st):
        def mk(s, nt):
            def f():
                if s % 4 == 0 and s > 0: k(f"s_add_u32 s{22+nt}, s{22+nt}, 4096")
                k(f"buffer_load_dwordx4 {V(XF(nt,s),4)}, v2, s[8:11], s{22+nt} offen offset:{1024*(s%4)}")
            return f
        return [mk(s, nt) for s in range(3 * st, 3 * st + 3) for nt in range(2)]
    def stage_loads(st, w=True):
        a = w_loads(st) if w else []
        b = x_loads(st)
        out = []
        while a or b:
            if a: out.append(a.pop(0))
            if b: out.append(b.pop(0))
        return out

    if conv:
        pre = sum([stage_loads(st, w=(st < 4)) for st in range(6)], [])
        k("s_cmp_ge_u32 s2, 192\ns_cselect_b32 s7, 3, s3\ns_cmp_eq_u32 s7, 3")
        k.hazard_flush()
        st0 = k.save()
        k.i(f"s_cbranch_scc1 {L}_NOCONV")
        gen_conv(k, pre, cs_loads)
        k.hazard_flush()
        k.i(f"s_branch {L}_JOIN")
        k.label(f"{L}_NOCONV"); k.restore(st0)
        cs_loads()
        for f in pre: f()
        k.hazard_flush()
        k.label(f"{L}_JOIN")
        k.barrier()
        for f in w_loads(4) + w_loads(5): f()
        later = {}
    else:
        cs_loads()
        for f in stage_loads(0) + stage_loads(1): f()
        later = {st: stage_loads(st + 2) for st in range(4)}

    k("v_add_u32 v6, 64512, v2\nv_mov_b32 v216, 0\nv_mov_b32 v217, 0")
    def a_reads(s):
        fs = []
        for mt in range(7):
            c = s * 7 + mt
            va, off = ("v2", c * 1024) if c < 63 else ("v6", (c - 63) * 1024)
            fs.append(f"ds_read_b128 {A(28*(s&1)+4*mt,4)}, {va} offset:{off}")
        return fs
    def sync_stage(st):
        k.wait_tag(f"w{st}")
        k.barrier(lg=False)
    sync_stage(0)
    for t in a_reads(0): k(t)
    k("v_add_f32 v232, v232, v233\nv_add_f32 v234, v234, v235\nv_add_f32 v236, v236, v237\nv_add_f32 v232, v232, v234\nv_add_f32 v232, v232, v236")
    k(f"v_add_u32 v5, {CSL}, v5\nds_write_b32 v5, v232")
    for s in range(18):
        fill = []
        if s + 1 < 18:
            if (s + 1) % 3 == 0: sync_stage((s + 1) // 3)
            fill += [(lambda t=t: k(t)) for t in a_reads(s + 1)]
        dots = [(lambda r=XF(nt, s) + q, nt=nt: k(f"v_dot2c_f32_bf16 v{216+nt}, v{r}, v{r}")) for nt in range(2) for q in range(4)]
        lds = later.get(s // 3, [])
        mine = [lds.pop(0) for _ in range(min(4, len(lds)))]
        n = 0
        for mt in range(7):
            for nt in range(2):
                c = "0" if s == 0 else V(ACC(nt, mt), 4)
                k(f"v_mfma_f32_16x16x32_bf16 {V(ACC(nt,mt),4)}, {A(28*(s&1)+4*mt,4)}, {V(XF(nt,s),4)}, {c}")
                if fill and n % 2 == 0: fill.pop(0)()
                if dots and n >= 2: dots.pop(0)()
                if mine and n % 3 == 1: mine.pop(0)()
                n += 1
        for f in fill + dots + mine: f()

    CS = 100
    k(f"v_lshlrev_b32 v7, 4, v4\nv_add_u32 v7, {CSL}, v7")
    for mt in range(7): k(f"ds_read_b128 {V(CS+4*mt,4)}, v7 offset:{64*mt}")
    for nt in range(2):
        a, b = 216 + nt, 218 + nt
        k(f"v_mov_b32 v{b}, v{a}")
        k(f"v_permlane16_swap_b32 v{a}, v{b}")
        k(f"v_add_f32 v{a}, v{a}, v{b}")
        k(f"v_mov_b32 v{b}, v{a}")
        k(f"v_permlane32_swap_b32 v{a}, v{b}")
        k(f"v_add_f32 v{a}, v{a}, v{b}")
    k("v_lshrrev_b32 v8, 1, v4\nv_and_b32 v9, 1, v4")
    k("s_lshl_b32 s6, s3, 5\nv_add_u32 v10, s6, v3")
    k(f"v_mul_u32_u24 v11, 10240, v8\nv_mul_u32_u24 v12, 80, v10\nv_add_u32 v11, v11, v12\nv_add_u32 v11, {PHK}, v11")
    k(f"v_mul_u32_u24 v12, 6144, v8\nv_mul_u32_u24 v13, 48, v10\nv_add_u32 v12, v12, v13\nv_mul_u32_u24 v13, 24, v9\nv_add_u32 v12, v12, v13\nv_add_u32 v12, {VIMG}, v12")
    k("v_mul_u32_u24 v13, 2304, v8\nv_lshl_add_u32 v14, v3, 3, v13\nv_lshl_add_u32 v13, v3, 4, v13")
    k(f"s_lshl_b32 s6, s20, 2\ns_add_u32 s6, s6, s3\ns_lshl_b32 s6, s6, 5\ns_lshl_b32 s7, s21, 1\ns_add_u32 s6, s6, s7\ns_mul_i32 s30, s6, 2304\ns_add_u32 s30, s30, {OFF_PQ}")
    k(f"s_mov_b32 s32, 0x3ae38e39\ns_mov_b32 s33, 0x3727c5ac\ns_mov_b32 s34, {LOG2E}")
    k("s_mov_b32 s36, 0x0000ffff\ns_mov_b32 s37, 0x0000ffff\ns_mov_b32 s38, 0xffff0000\ns_mov_b32 s39, 0xffff0000")
    EP, EN = 16, 34
    for nt in range(2):
        T = ACC(nt, 0); P = 52 + 24 * nt; VV = P + 18
        m, nm, rs, sc, bp, bn, mx, mn = 220, 222, 224, 226, 228, 230, 238, 239
        k(f"v_mul_f32 v{m}, s32, v{T+27}")
        k(f"v_mul_f32 v{m+1}, v{m}, v{m}")
        k(f"v_fma_f32 v{m+1}, v{216+nt}, s32, -v{m+1}")
        k(f"v_max_f32 v{m+1}, 0, v{m+1}\nv_add_f32 v{m+1}, s33, v{m+1}\nv_rsq_f32 v{rs}, v{m+1}")
        k(f"v_sub_f32 v{nm}, 0, v{m}\nv_sub_f32 v{nm+1}, 0, v{m}")
        for q in range(14):
            k(f"v_pk_fma_f32 {V(T+2*q,2)}, {V(CS+2*q,2)}, {V(nm,2)}, {V(T+2*q,2)}")
        k(f"v_mov_b32 v{rs+1}, v{rs}\nv_mul_f32 v{sc}, s34, v{rs}\nv_mul_f32 v{sc+1}, s34, v{rs}")
        k(f"v_max3_f32 v{mx}, v{T}, v{T+1}, v{T+2}\nv_min3_f32 v{mn}, v{T}, v{T+1}, v{T+2}")
        for q in range(7):
            k(f"v_max3_f32 v{mx}, v{mx}, v{T+3+2*q}, v{T+4+2*q}\nv_min3_f32 v{mn}, v{mn}, v{T+3+2*q}, v{T+4+2*q}")
        k(f"v_max_f32 v{mx}, v{mx}, v{T+17}\nv_min_f32 v{mn}, v{mn}, v{T+17}")
        k(f"v_mul_f32 v{bp}, v{mx}, v{sc}\nv_mul_f32 v{bn}, v{mn}, v{sc}")
        k(f"v_sub_f32 v{bp}, 0, v{bp}\nv_mov_b32 v{bn+1}, v{bn}\nv_mov_b32 v{bp+1}, v{bp}")
        for q in range(9):
            k(f"v_pk_fma_f32 {V(EP+2*q,2)}, {V(T+2*q,2)}, {V(sc,2)}, {V(bp,2)}")
            k(f"v_pk_fma_f32 {V(EN+2*q,2)}, {V(T+2*q,2)}, {V(sc,2)}, {V(bn,2)} neg_lo:[1,0,0] neg_hi:[1,0,0]")
        for q in range(18):
            k(f"v_exp_f32 v{EP+q}, v{EP+q}\nv_exp_f32 v{EN+q}, v{EN+q}")
        for q in range(5): k(f"v_pk_mul_f32 {V(T+18+2*q,2)}, {V(T+18+2*q,2)}, {V(rs,2)}")
        k(f"v_mov_b32 v{T+27}, 1.0")
        for q in range(5): k(f"v_cvt_pk_bf16_f32 v{VV+q}, v{T+18+2*q}, v{T+19+2*q}")
        sp, sn = 240, 242
        k(f"v_pk_add_f32 {V(sp,2)}, {V(EP,2)}, {V(EP+2,2)}\nv_pk_add_f32 {V(sn,2)}, {V(EN,2)}, {V(EN+2,2)}")
        for q in range(2, 9):
            k(f"v_pk_add_f32 {V(sp,2)}, {V(sp,2)}, {V(EP+2*q,2)}\nv_pk_add_f32 {V(sn,2)}, {V(sn,2)}, {V(EN+2*q,2)}")
        k(f"v_add_f32 v{sp}, v{sp}, v{sp+1}\nv_add_f32 v{sn}, v{sn}, v{sn+1}\nv_rcp_f32 v{sp}, v{sp}\nv_rcp_f32 v{sn}, v{sn}")
        k(f"ds_write_b64 v12, {V(VV,2)} offset:{768*nt}\nds_write_b64 v12, {V(VV+2,2)} offset:{768*nt+8}\nds_write_b32 v12, v{VV+4} offset:{768*nt+16}")
        k(f"v_mov_b32 v{sp+1}, v{sp}\nv_mov_b32 v{sn+1}, v{sn}")
        for q in range(9):
            k(f"v_pk_mul_f32 {V(EP+2*q,2)}, {V(EP+2*q,2)}, {V(sp,2)}\nv_pk_mul_f32 {V(EN+2*q,2)}, {V(EN+2*q,2)}, {V(sn,2)}")
        for q in range(9):
            k(f"v_cvt_pk_bf16_f32 v{P+q}, v{EP+2*q}, v{EP+2*q+1}\nv_cvt_pk_bf16_f32 v{P+9+q}, v{EN+2*q}, v{EN+2*q+1}")
        k("s_mov_b64 exec, s[38:39]")
        for q in range(4): k(f"ds_write_b128 v11, {V(P+4*q,4)} offset:{1280*nt + 16*q}")
        k(f"ds_write_b64 v11, {V(P+16,2)} offset:{1280*nt + 64}")
        k("s_mov_b64 exec, s[36:37]")
        for q, off in enumerate((0, 1024, 512, 1536)):
            k(f"buffer_store_dwordx4 {V(P+4*q,4)}, v13, s[8:11], s30 offen offset:{off + 256*nt}")
        k(f"buffer_store_dwordx2 {V(P+16,2)}, v14, s[8:11], s30 offen offset:{2048 + 128*nt}")
        k("s_mov_b64 exec, -1")
    k("s_lshr_b32 s6, s3, 1\ns_and_b32 s7, s3, 1")
    k("v_lshrrev_b32 v8, 2, v3\nv_and_b32 v9, 3, v3\nv_lshl_add_u32 v8, v4, 3, v8")
    k(f"s_mul_i32 s31, s6, 6144\ns_lshl_b32 s35, s7, 5\ns_add_u32 s31, s31, s35\ns_add_u32 s31, s31, {VIMG}")
    k("v_mul_u32_u24 v10, 48, v8\nv_lshl_add_u32 v10, v9, 3, v10\nv_add_u32 v10, s31, v10")
    k(f"s_mul_i32 s31, s6, 10240\ns_add_u32 s31, s31, {PHK}")
    k("v_mul_u32_u24 v11, 80, v8\nv_lshl_add_u32 v11, v9, 3, v11\nv_add_u32 v11, s31, v11")
    k("s_lshl_b32 s35, s7, 4\nv_lshlrev_b32 v12, 2, v4\nv_add_u32 v12, s35, v12\ns_mov_b32 s35, 0x7ff00000")
    for r in range(4):
        k(f"v_add_u32 v13, {r}, v12")
        k("v_cmp_le_u32 vcc, 12, v13\nv_cndmask_b32 v14, 0, 3, vcc\nv_sub_u32 v14, v13, v14")
        k(f"v_mul_u32_u24 v14, 144, v14\nv_lshl_add_u32 v{128+r}, v3, 2, v14")
        k("v_subrev_u32 v14, 9, v13\nv_cmp_gt_u32 vcc, 3, v14")
        k(f"v_mov_b32 v15, s35\nv_cndmask_b32 v{128+r}, v{128+r}, v15, vcc")
        k("v_cmp_le_u32 vcc, 22, v13")
        k(f"v_cndmask_b32 v{128+r}, v{128+r}, v15, vcc")
    k(f"s_lshl_b32 s31, s21, 1\ns_add_u32 s31, s31, s6\ns_mul_i32 s31, s31, 2736\ns_add_u32 s31, s31, {kvoff}")
    k.barrier()
    for ks in range(4):
        for h in range(2): k(f"ds_read_b64_tr_b16 {A(4*ks+2*h,2)}, v10 offset:{1536*ks + 192*h}")
        for ft in range(3):
            for h in range(2): k(f"ds_read_b64_tr_b16 {A(16+12*ks+4*ft+2*h,2)}, v11 offset:{2560*ks + 320*h + 32*ft}")
    for ks in range(4):
        for ft in range(3):
            c = "0" if ks == 0 else V(132+4*ft, 4)
            k(f"v_mfma_f32_16x16x32_bf16 {V(132+4*ft,4)}, {A(4*ks,4)}, {A(16+12*ks+4*ft,4)}, {c}")
    k("s_mov_b32 s36, 0x000f000f\ns_mov_b32 s37, 0x000f000f")
    for ft in range(3):
        if ft == 2: k("s_mov_b64 exec, s[36:37]")
        for r in range(4):
            k(f"buffer_atomic_add_f32 v{132+4*ft+r}, v{128+r}, s[8:11], s31 offen offset:{64*ft}")
    k.label(f"{L}_END")
    k.i("s_endpgm")
    return k

def gen_conv(k, pre, cs_loads):
    pre = list(pre)
    k(f"s_mul_i32 s40, s2, 3\ns_add_u32 s40, s40, s3\ns_mul_i32 s41, s3, {CONVW}\ns_add_u32 s41, s41, {CONVB}")
    k("s_lshl_b32 s42, s40, 12")
    HD = lambda i: 192 + 6 * i
    for i in range(4):
        k(f"buffer_load_dwordx4 {V(HD(i),4)}, v2, s[12:15], s42 offen offset:{1024*i}")
        k(f"buffer_load_dwordx2 {V(HD(i)+4,2)}, v2, s[12:15], s42 offen offset:{1024*i+16}")
    k(f"s_add_u32 s43, s41, 16640\ns_mov_b32 m0, s43\ns_add_u32 s44, s42, {OFF_UT}")
    for i in range(4): k(f"buffer_load_dwordx4 v2, s[8:11], s44 offen offset:{1024*i} lds", tag="u")
    k("s_lshr_b32 s45, s40, 1\ns_lshl_b32 s45, s45, 2\ns_load_dword s46, s[26:27], s45")
    cs_loads()
    for _ in range(8): pre.pop(0)()
    k("v_add_u32 v216, s41, v2")
    k("v_lshlrev_b32 v217, 3, v1\nv_add_u32 v217, s43, v217")
    k("v_add_u32 v218, 1, v3\nv_and_b32 v219, 3, v218\nv_and_b32 v218, 0x1c, v218\nv_lshl_add_u32 v218, v4, 3, v218\nv_lshlrev_b32 v218, 1, v218")
    k("v_mul_u32_u24 v219, 4160, v219\nv_add3_u32 v218, v218, v219, s41")
    k("v_lshlrev_b32 v219, 5, v3\nv_lshlrev_b32 v220, 4, v4\nv_sub_u32 v220, v220, v219\ns_add_u32 s47, s43, 480\nv_add_u32 v220, s47, v220")
    k("v_lshlrev_b32 v221, 3, v4\nv_add_u32 v221, v221, v219\ns_add_u32 s47, s43, 504\nv_sub_u32 v222, s47, v221")
    for r in range(224, 228): k(f"v_mov_b32 v{r}, 0")
    k("ds_write_b64 v217, v[224:225] offset:4096")
    k("s_and_b32 s45, s40, 1\ns_cmp_eq_u32 s45, 0\ns_cselect_b32 s45, 16, 0\ns_lshl_b32 s46, s46, s45\ns_and_b32 s46, s46, 0xffff0000")
    for i in range(4):
        d = HD(i)
        k(f"ds_write_b128 v216, {V(d,4)} offset:{32 + 1024*i}")
        for q in range(4): k(f"v_alignbit_b32 v{240+q}, v{d+q+1}, v{d+q}, 16")
        k(f"ds_write_b128 v216, v[240:243] offset:{32 + 4160 + 1024*i}")
        for q in range(4): k(f"v_mov_b32 v{244+q}, v{d+q+1}")
        k(f"ds_write_b128 v216, v[244:247] offset:{32 + 2*4160 + 1024*i}")
        for q in range(4): k(f"v_alignbit_b32 v{248+q}, v{d+q+2}, v{d+q+1}, 16")
        k(f"ds_write_b128 v216, v[248:251] offset:{32 + 3*4160 + 1024*i}")
        if i == 0:
            k("s_mov_b64 exec, 1")
            for r in range(4): k(f"ds_write_b128 v216, v[224:227] offset:{4160*r}")
            k("ds_write_b128 v216, v[224:227] offset:16")
            k(f"v_mov_b32 v228, 0\nv_mov_b32 v229, 0\nv_mov_b32 v230, 0\nv_lshlrev_b32 v231, 16, v{d}")
            k(f"ds_write_b128 v216, v[228:231] offset:{4160+16}")
            k(f"v_mov_b32 v252, 0\nv_mov_b32 v253, 0\nv_mov_b32 v254, 0\nv_mov_b32 v255, v{d}")
            k(f"ds_write_b128 v216, v[252:255] offset:{2*4160+16}")
            k(f"v_mov_b32 v226, v231\nv_mov_b32 v227, v240")
            k(f"ds_write_b128 v216, v[224:227] offset:{3*4160+16}")
            k("s_mov_b64 exec, -1")
    k.wait_tag("u")
    def reads(rho):
        b = 64 * (rho & 1)
        out = []
        for j in range(8):
            s = rho + 8 * j
            out.append(f"ds_read_b64 {A(b+4*j,2)}, v218 offset:{64*s}")
            out.append(f"ds_read_b64 {A(b+4*j+2,2)}, v218 offset:{64*s+8}")
            delta = 8 * j - rho
            out.append(f"ds_read_b128 {A(b+32+4*j,4)}, v220 offset:{3584 - 64*delta}")
        return out
    for t in reads(0): k(t)
    pairs = sorted([(sg, tau) for sg in range(8) for tau in range(8) if sg + tau <= 7], key=lambda p: (max(p), p))
    seen = set()
    for rho in range(8):
        b = 64 * (rho & 1)
        fill = reads(rho + 1) if rho < 7 else []
        for n, (sg, tau) in enumerate(pairs):
            c8 = sg + tau
            acc = V(160 + 4 * c8, 4)
            c = acc if c8 in seen else "0"
            seen.add(c8)
            k(f"v_mfma_f32_16x16x32_bf16 {acc}, {A(b+4*sg,4)}, {A(b+32+4*tau,4)}, {c}")
            if fill and n >= 8: k(fill.pop(0))
            if pre and n % 5 == 2: pre.pop(0)()
        for t in fill: k(t)
    for f in pre: f()
    for c8 in range(8): k(f"ds_read_b64 {V(192+2*c8,2)}, v222 offset:{3584 - 512*c8}")
    k(f"s_add_u32 s44, s42, {OFF_YT}\ns_mov_b32 s47, 0xffff0000")
    for c8 in range(8):
        a = 160 + 4 * c8; u = 192 + 2 * c8
        k(f"v_and_b32 v240, s47, v{u+1}\nv_lshlrev_b32 v241, 16, v{u+1}\nv_and_b32 v242, s47, v{u}\nv_lshlrev_b32 v243, 16, v{u}")
        for r in range(4): k(f"v_fmac_f32 v{a+r}, s46, v{240+r}")
        k(f"v_cvt_pk_bf16_f32 v{u}, v{a}, v{a+1}\nv_cvt_pk_bf16_f32 v{u+1}, v{a+2}, v{a+3}")
        k(f"buffer_store_dwordx2 {V(u,2)}, v221, s[8:11], s44 offen offset:{512*c8}")
```

```python
from asmgen import *
from layout import *
from k0 import srd

KVL, OIMG, YL, STAT = 0, 87552, 124416, 133632
K2_LDS = 134656

def gen_out(name, xoff, kvoff, stoff, final):
    k = Kern(name)
    L = name.upper()
    k("s_cmp_ge_u32 s2, 256")
    k.i(f"s_cbranch_scc1 {L}_END")
    k("s_load_dwordx2 s[16:17], s[0:1], 96\ns_load_dwordx2 s[18:19], s[0:1], 80")
    k("v_and_b32 v1, 63, v0\nv_lshrrev_b32 v5, 6, v0\nv_lshlrev_b32 v2, 4, v1")
    k("v_readfirstlane_b32 s3, v5")
    k("v_and_b32 v3, 15, v0\nv_bfe_u32 v4, v0, 4, 2\nv_and_b32 v6, 31, v0\nv_bfe_u32 v7, v0, 5, 1")
    k("s_lshr_b32 s20, s2, 5\ns_lshl_b32 s20, s20, 3\ns_and_b32 s4, s2, 7\ns_add_u32 s20, s20, s4\ns_bfe_u32 s21, s2, 0x20003")
    srd(k, 8, 16, WS_SIZE)
    srd(k, 12, 18, XBYTES)
    k(f"s_lshl_b32 s4, s20, 5\ns_lshl_b32 s5, s3, 3\ns_add_u32 s4, s4, s5\ns_mul_i32 s22, s4, 2304\ns_add_u32 s22, s22, {OFF_PQ}")
    k(f"s_mul_i32 s24, s3, 21888\ns_add_u32 s23, s24, {kvoff}")
    k("v_lshlrev_b32 v8, 3, v6\nv_lshl_add_u32 v8, v7, 2, v8")
    k("s_lshl_b32 s4, s3, 1\ns_add_u32 s4, s4, 1\ns_cmp_eq_u32 s3, 0\ns_cselect_b32 s26, 0, s4\ns_mul_i32 s25, s21, 9\ns_add_u32 s25, s25, s26")
    k(f"s_mul_i32 s27, s25, 18432\ns_add_u32 s27, s27, {OFF_WO}")
    k.hazard_flush()
    st0 = k.save()
    k("s_cmp_eq_u32 s3, 0")
    k.i(f"s_cbranch_scc0 {L}_B")
    body(k, L + "A", 3, xoff, stoff, final)
    k.label(f"{L}_B"); k.restore(st0)
    body(k, L + "B", 2, xoff, stoff, final)
    k.label(f"{L}_END")
    k.i("s_endpgm")
    return k

def body(k, L, NT, xoff, stoff, final):
    PB = lambda i: 16 + 10 * i
    WA = lambda t, s: (t * 18 + s) * 4
    kvl = []
    def kv_dma(j):
        def f():
            if j % 4 == 0:
                if j: k("s_add_u32 s23, s23, 4096\ns_add_u32 s24, s24, 4096")
                k("s_mov_b32 m0, s24")
            if j == 21: k("s_mov_b64 exec, 0xffffff")
            k(f"buffer_load_dwordx4 v2, s[8:11], s23 offen offset:{1024*(j%4)} lds", tag=f"kv{j}")
            if j == 21: k("s_mov_b64 exec, -1")
        return f
    def pq_load(i):
        def f():
            if i: k("s_add_u32 s22, s22, 2304")
            k(f"buffer_load_dwordx4 {V(PB(i),4)}, v2, s[8:11], s22 offen")
            k(f"buffer_load_dwordx4 {V(PB(i)+4,4)}, v2, s[8:11], s22 offen offset:1024")
            k(f"buffer_load_dword v{PB(i)+8}, v8, s[8:11], s22 offen offset:2048")
        return f
    j = 0
    for i in range(8):
        need = (2736 * (i + 1) + 1023) // 1024
        while j < need: kv_dma(j)(); j += 1
        pq_load(i)()
    wo = []
    for s in range(18):
        for t in range(NT):
            def f(s=s, t=t):
                if s % 4 == 0 and t == 0:
                    for tt in range(NT): k(f"s_add_u32 s{28+tt}, s27, {tt*18432 + s*1024}")
                k(f"buffer_load_dwordx4 {A(WA(t,s),4)}, v2, s[8:11], s{28+t} offen offset:{1024*(s%4)}")
            wo.append(f)
    XR = lambda t: 96 + 4 * t
    def xy_loads():
        k("v_and_b32 v9, 1, v4\nv_mul_u32_u24 v9, 18432, v9\nv_lshrrev_b32 v10, 1, v4\nv_lshl_add_u32 v9, v10, 8, v9\nv_lshl_add_u32 v9, v3, 4, v9")
        k(f"s_mul_i32 s31, s20, 36864\ns_lshl_b32 s4, s25, 9\ns_add_u32 s31, s31, s4")
        k(f"s_add_u32 s32, s31, {xoff}")
        for t in range(NT): k(f"buffer_load_dwordx4 {V(XR(t),4)}, v9, s[8:11], s32 offen offset:{512*t}")
        k("v_lshrrev_b32 v10, 2, v1\nv_lshlrev_b32 v10, 12, v10\nv_and_b32 v11, 3, v1\nv_lshl_add_u32 v10, v11, 4, v10")
        k(f"s_lshl_b32 s33, s25, 16\ns_lshl_b32 s4, s20, 6\ns_add_u32 s33, s33, s4\ns_add_u32 s33, s33, {OFF_YT}")
        k(f"s_lshl_b32 s34, s26, 10\ns_add_u32 s34, s34, {YL}")
        for t in range(NT):
            if t: k("s_add_u32 s33, s33, 65536\ns_add_u32 s34, s34, 1024")
            k("s_mov_b32 m0, s34")
            k("buffer_load_dwordx4 v10, s[8:11], s33 offen lds", tag="y")
    for _ in range(3 * NT): wo.pop(0)()
    k("v_lshrrev_b32 v11, 3, v6\nv_and_b32 v12, 3, v6\nv_lshl_add_u32 v11, v11, 2, v12\nv_bfe_u32 v12, v6, 2, 1\nv_mul_u32_u24 v12, 9, v12\nv_add_u32 v12, v12, v11")
    k("v_cmp_gt_u32 vcc, 9, v11\nv_cndmask_b32 v12, 18, v12, vcc\nv_mul_u32_u24 v12, 144, v12\ns_mul_i32 s4, s3, 21888\nv_add_u32 v12, s4, v12")
    k("v_lshl_add_u32 v13, v7, 3, v12\nv_lshl_add_u32 v12, v7, 6, v12")
    k(f"v_and_b32 v14, 1, v4\nv_mul_u32_u24 v14, 18432, v14\nv_mul_u32_u24 v15, 2304, v7\nv_add_u32 v14, v14, v15\nv_lshl_add_u32 v14, v3, 4, v14\ns_mul_i32 s4, s3, 4608\ns_add_u32 s4, s4, {OIMG}\nv_add_u32 v14, s4, v14")
    for i in range(8): k(f"v_mov_b32 v{PB(i)+9}, 0")
    KR = lambda b: 108 + 18 * b
    KF = lambda b: 144 + 10 * b
    OA = lambda b: 164 + 16 * b
    OV = 196
    OP = 216
    k(f"v_mov_b32 v{KF(0)+9}, 0\nv_mov_b32 v{KF(1)+9}, 0\ns_mov_b32 s35, 0x358637bd")
    def kv_reads(i):
        need = (2736 * (i + 1) + 1023) // 1024
        k.wait_tag(f"kv{need-1}")
        b = i & 1
        for q in range(4): k(f"ds_read_b128 {V(KR(b)+4*q,4)}, v12 offset:{2736*i + 16*q}")
        k(f"ds_read_b64 {V(KR(b)+16,2)}, v13 offset:{2736*i + 128}")
    def o_mfma(i):
        b = i & 1
        for q in range(9): k(f"v_cvt_pk_bf16_f32 v{KF(b)+q}, v{KR(b)+2*q}, v{KR(b)+2*q+1}")
        k(f"v_mfma_f32_32x32x16_bf16 {V(OA(b),16)}, {V(KF(b),4)}, {V(PB(i),4)}, 0")
        k(f"v_mfma_f32_32x32x16_bf16 {V(OA(b),16)}, {V(KF(b)+4,4)}, {V(PB(i)+4,4)}, {V(OA(b),16)}")
        k(f"v_mfma_f32_32x32x8_bf16 {V(OA(b),16)}, {V(KF(b)+8,2)}, {V(PB(i)+8,2)}, {V(OA(b),16)}")
    written = 0
    def o_fin(i):
        nonlocal written
        b = i & 1
        k(f"v_add_f32 v{OA(b)+9}, s35, v{OA(b)+9}\nv_rcp_f32 v{OA(b)+9}, v{OA(b)+9}")
        for q in range(9): k(f"v_mul_f32 v{OV+9*b+q}, v{OA(b)+q}, v{OA(b)+9}")
        if b == 1:
            p = i // 2
            for q in range(9): k(f"v_cvt_pk_bf16_f32 v{OP+9*p+q}, v{OV+2*q}, v{OV+2*q+1}")
            while (written + 1) * 4 <= 9 * (p + 1):
                k(f"ds_write_b128 v14, {V(OP+4*written,4)} offset:{256*written}"); written += 1
    nsp = (len(wo) + 7) // 8
    kv_reads(0)
    for i in range(8):
        if i + 1 < 8: kv_reads(i + 1)
        o_mfma(i)
        for _ in range(nsp):
            if wo: wo.pop(0)()
        if i > 0: o_fin(i - 1)
    xy_loads()
    o_fin(7)
    k.barrier()
    OB = lambda b, nt: 108 + 8 * b + 4 * nt
    AC = lambda t, nt: 124 + 8 * t + 4 * nt
    k(f"v_add_u32 v11, {OIMG}, v2")
    def b_reads(s): return [f"ds_read_b128 {V(OB(s&1,nt),4)}, v11 offset:{18432*nt + 1024*s}" for nt in range(2)]
    for t in b_reads(0): k(t)
    for s in range(18):
        fill = b_reads(s + 1) if s < 17 else []
        for t in range(NT):
            for nt in range(2):
                c = "0" if s == 0 else V(AC(t, nt), 4)
                k(f"v_mfma_f32_16x16x32_bf16 {V(AC(t,nt),4)}, {A(WA(t,s),4)}, {V(OB(s&1,nt),4)}, {c}")
                if fill: k(fill.pop(0))
    k("v_lshrrev_b32 v12, 1, v4\nv_lshlrev_b32 v12, 3, v12\nv_lshrrev_b32 v13, 2, v3\nv_add_u32 v12, v12, v13\nv_lshlrev_b32 v12, 6, v12")
    k(f"v_and_b32 v13, 1, v4\nv_lshl_add_u32 v12, v13, 5, v12\nv_and_b32 v13, 3, v3\nv_lshl_add_u32 v12, v13, 3, v12\ns_lshl_b32 s4, s26, 10\ns_add_u32 s4, s4, {YL}\nv_add_u32 v12, s4, v12")
    k.wait_tag("y")
    YR = lambda t: 148 + 4 * t
    for t in range(NT):
        for q in range(2): k(f"ds_read_b64_tr_b16 {V(YR(t)+2*q,2)}, v12 offset:{1024*t + 256*q}")
    k("s_mov_b32 s36, 0xffff0000")
    XU = 160
    for t in range(NT):
        for r in range(4): k(f"v_permlane16_swap_b32 v{AC(t,0)+r}, v{AC(t,1)+r}")
        for q in range(4): k(f"v_lshlrev_b32 v{XU+2*q}, 16, v{XR(t)+q}\nv_and_b32 v{XU+2*q+1}, s36, v{XR(t)+q}")
        for q in range(4): k(f"v_pk_add_f32 {V(AC(t,0)+2*q,2)}, {V(AC(t,0)+2*q,2)}, {V(XU+2*q,2)}")
    S1, S2 = 168, 170
    first = True
    for t in range(NT):
        for q in range(4):
            x = V(AC(t, 0) + 2 * q, 2)
            if first:
                k(f"v_pk_mul_f32 {V(S2,2)}, {x}, {x}\nv_pk_add_f32 {V(S1,2)}, {x}, {V(AC(t,0)+2,2)}")
                first = False
            else:
                k(f"v_pk_fma_f32 {V(S2,2)}, {x}, {x}, {V(S2,2)}")
                if not (t == 0 and q == 1): k(f"v_pk_add_f32 {V(S1,2)}, {V(S1,2)}, {x}")
    k(f"v_add_f32 v{S1}, v{S1}, v{S1+1}\nv_add_f32 v{S1+1}, v{S2}, v{S2+1}")
    k(f"v_mov_b32 v{S2}, v{S1}\nv_mov_b32 v{S2+1}, v{S1+1}")
    k(f"v_permlane32_swap_b32 v{S1}, v{S2}\nv_permlane32_swap_b32 v{S1+1}, v{S2+1}")
    k(f"v_pk_add_f32 {V(S1,2)}, {V(S1,2)}, {V(S2,2)}")
    k(f"v_lshlrev_b32 v13, 3, v6\nv_add_u32 v14, {STAT}, v13\ns_lshl_b32 s4, s3, 8\nv_add_u32 v15, s4, v14")
    k(f"ds_write_b64 v15, {V(S1,2)}")
    YU = 176
    for t in range(NT):
        for q in range(4): k(f"v_lshlrev_b32 v{YU+8*t+2*q}, 16, v{YR(t)+q}\nv_and_b32 v{YU+8*t+2*q+1}, s36, v{YR(t)+q}")
    k(f"s_lshl_b32 s37, s20, 10\ns_add_u32 s37, s37, {stoff}")
    k("s_lshl_b32 s38, s21, 8")
    k("v_add_u32 v160, s21, v7\nv_add_u32 v161, 1, v160\nv_and_b32 v161, 3, v161\nv_lshl_add_u32 v161, v161, 8, v13")
    k("v_add_u32 v162, 3, v160\nv_and_b32 v162, 3, v162\nv_lshl_add_u32 v162, v162, 8, v13")
    k.barrier()
    if NT == 2:
        for w in range(4): k(f"ds_read_b64 {V(200+2*w,2)}, v14 offset:{256*w}")
        k(f"v_pk_add_f32 v[200:201], v[200:201], v[202:203]\nv_pk_add_f32 v[204:205], v[204:205], v[206:207]\nv_pk_add_f32 v[200:201], v[200:201], v[204:205]")
        k("v_min_u32 v201, -2, v201")
        k("s_add_u32 s39, s37, s38\ns_cmp_eq_u32 s3, 3\ns_cselect_b32 s39, s39, 0x7ff00000\ns_mov_b64 exec, 0xffffffff")
        k("buffer_store_dwordx2 v[200:201], v13, s[8:11], s39 offen sc1")
        k("s_mov_b64 exec, -1")
    k("s_mov_b32 s40, 0x100000")
    k.wait(vm=0, lg=0)
    k.hazard_flush()
    k.label(f"{L}_POLL")
    k("buffer_load_dwordx2 v[164:165], v161, s[8:11], s37 offen sc1\nbuffer_load_dwordx2 v[166:167], v162, s[8:11], s37 offen sc1")
    k("v_max_u32 v163, v165, v167")
    k("v_cmp_eq_u32 vcc, -1, v163")
    k("s_sub_u32 s40, s40, 1\ns_cselect_b64 s[44:45], 0, vcc\ns_cmp_eq_u64 s[44:45], 0")
    k.i(f"s_cbranch_scc1 {L}_GO")
    k.i("s_sleep 2")
    k.i(f"s_branch {L}_POLL")
    k.label(f"{L}_GO")
    k("v_pk_add_f32 v[164:165], v[164:165], v[166:167]")
    k("v_mov_b32 v166, v164\nv_mov_b32 v167, v165")
    k("v_permlane32_swap_b32 v164, v166\nv_permlane32_swap_b32 v165, v167")
    k("v_pk_add_f32 v[164:165], v[164:165], v[166:167]")
    k("s_mov_b32 s41, 0x3ae38e39\ns_mov_b32 s42, 0x3727c5ac")
    k("v_mul_f32 v164, s41, v164\nv_mul_f32 v166, v164, v164\nv_fma_f32 v165, v165, s41, -v166\nv_max_f32 v165, 0, v165\nv_add_f32 v165, s42, v165\nv_rsq_f32 v166, v165")
    k("v_mul_f32 v164, v164, v166\nv_mov_b32 v167, v166\nv_sub_f32 v164, 0, v164\nv_mov_b32 v165, v164")
    if final:
        k("v_and_b32 v9, 1, v4\nv_lshl_add_u32 v9, v9, 4, v3\nv_mul_u32_u24 v9, 1152, v9\nv_lshrrev_b32 v10, 1, v4\nv_lshl_add_u32 v9, v10, 4, v9")
        k("s_mul_i32 s32, s20, 36864\ns_lshl_b32 s4, s25, 5\ns_add_u32 s32, s32, s4")
    else:
        k(f"s_add_u32 s32, s31, {OFF_XF2}")
    for t in range(NT):
        for q in range(4):
            x = V(AC(t, 0) + 2 * q, 2); tt = V(200 + 2 * q, 2)
            k(f"v_pk_fma_f32 {tt}, {x}, v[166:167], v[164:165]")
            k(f"v_pk_fma_f32 {x}, {tt}, {V(YU+8*t+2*q,2)}, {x}")
        for q in range(4): k(f"v_cvt_pk_bf16_f32 v{XR(t)+q}, v{AC(t,0)+2*q}, v{AC(t,0)+2*q+1}")
        if final: k(f"buffer_store_dwordx4 {V(XR(t),4)}, v9, s[12:15], s32 offen offset:{32*t}")
        else: k(f"buffer_store_dwordx4 {V(XR(t),4)}, v9, s[8:11], s32 offen offset:{512*t}")
    k.i("s_endpgm")
```

```python
S, D, H, DH = 2048, 576, 32, 18
OFF_WQ  = 0x000000
OFF_CS  = 0x1F8000
OFF_WO  = 0x204000
OFF_UT  = 0x2A8000
OFF_YT  = 0x4E8000
OFF_XF0 = 0x728000
OFF_XF2 = 0x968000
OFF_PQ  = 0xBA8000
OFF_KV  = 0x1028000
KV_STRIDE = 0x18000
OFF_ST  = 0x1058000
ST_STRIDE = 0x10000
WS_SIZE = 0x1078000
WQ_HP = 129024
XBYTES = S * D * 2
```

```python
import sys
from asmgen import *
from layout import *
import k0, k1, k2
HEADER = open("interleave_layers__linear_kernel_hedgehog__ssm_conv_h3__prompt.s.ref").read().split("; Override launch")[0]
def build(kernels, launches, path):
    out = [HEADER.rstrip("\n")]
    for (name, grid, block, lds) in launches:
        out.append(f"; @launch kernel={name} grid=({grid},1,1) block=({block},1,1) lds={lds}")
    out.append('.amdgcn_target "amdgcn-amd-amdhsa--gfx950"')
    out.append(".text")
    for k in kernels: out.append(k.text())
    out.append('.section .rodata,"a"')
    for k in kernels: out.append(k.desc())
    open(path, "w").write("\n".join(out))
    for k in kernels: print(k.name, "ins", k.nins, "v", k.maxv + 1, "a", k.maxa + 1, "s", k.maxs + 1)
def full():
    ks = [k0.gen_k0(), k1.gen_qkv("k1_kernel", OFF_XF0, OFF_KV, True), k2.gen_out("k2_kernel", OFF_XF0, OFF_KV, OFF_ST, False),
          k1.gen_qkv("k3_kernel", OFF_XF2, OFF_KV + KV_STRIDE, False), k2.gen_out("k4_kernel", OFF_XF2, OFF_KV + KV_STRIDE, OFF_ST + ST_STRIDE, True)]
    ls = [("k0_kernel", k0.K0_GRID, 256, k0.K0_LDS), ("k1_kernel", 256, 256, k1.K1_LDS), ("k2_kernel", 256, 256, k2.K2_LDS),
          ("k3_kernel", 256, 256, k1.K1_LDS), ("k4_kernel", 256, 256, k2.K2_LDS)]
    return ks, ls
if __name__ == "__main__":
    ks, ls = full()
    build(ks, ls, sys.argv[1] if len(sys.argv) > 1 else "t2.s")
```

```python
from build import *
def empty():
    k = Kern("empty_kernel"); k("v_mov_b32 v1, 0"); k.i("s_endpgm"); return k
ks, ls = full()
build(ks + [empty()], ls + [("empty_kernel", 256, 256, 0)] * 4, "v_empty4.s")
build(ks + [empty()], [("empty_kernel", 256, 256, 0)] * 4 + ls, "v_empty4pre.s")
build(ks, ls[:1] + ls, "v_k0twice.s")
build(ks, ls[:2] + [ls[0]] + ls[1:], "v_k0k1twice.s")
```

```python
import re, copy

TRANS = ("v_exp_f32", "v_log_f32", "v_rcp_f32", "v_rsq_f32", "v_sqrt_f32", "v_sin_f32", "v_cos_f32", "v_rcp_iflag_f32")
_MOD_RE = re.compile(r"\b(op_sel_hi|op_sel|neg_lo|neg_hi|quad_perm):\[[^\]]*\]")
_REG_RE = re.compile(r"^-?(?:abs\(|\|)?([vas])(?:(\d+)|\[(\d+):(\d+)\])\)?\|?$")

def regs_of(tok):
    tok = tok.strip()
    if tok in ("vcc", "exec", "m0", "scc"):
        return [("x", tok)]
    if tok in ("vcc_lo", "vcc_hi"): return [("x", "vcc")]
    if tok in ("exec_lo", "exec_hi"): return [("x", "exec")]
    m = _REG_RE.match(tok)
    if not m: return []
    k = m.group(1)
    if m.group(2) is not None:
        return [(k, int(m.group(2)))]
    return [(k, i) for i in range(int(m.group(3)), int(m.group(4)) + 1)]

def V(a, n=1):
    return f"v{a}" if n == 1 else f"v[{a}:{a+n-1}]"
def A(a, n=1):
    return f"a{a}" if n == 1 else f"a[{a}:{a+n-1}]"
def Sg(a, n=1):
    return f"s{a}" if n == 1 else f"s[{a}:{a+n-1}]"

class Inst:
    __slots__ = ("text", "op", "ops", "rest", "kind", "reads", "writes", "passes", "srcc", "srcab", "isdpp", "lds_dma", "wide_store_data", "sgpr_reads_vmem")

def parse(text):
    t = text.split(";")[0].strip()
    sp = t.split(None, 1)
    op = sp[0]
    rest = sp[1] if len(sp) > 1 else ""
    mods = " ".join(m.group(0) for m in _MOD_RE.finditer(rest))
    rest2 = _MOD_RE.sub("", rest)
    parts = [p.strip() for p in rest2.split(",")] if rest2.strip() else []
    ops = []
    tail = ""
    for p in parts:
        w = p.split()
        ops.append(w[0] if w else "")
        tail += " " + " ".join(w[1:])
    tail += " " + mods
    I = Inst(); I.text = text; I.op = op; I.ops = ops; I.rest = tail
    I.reads = []; I.writes = []; I.passes = 0; I.srcc = []; I.srcab = []; I.isdpp = False; I.lds_dma = False; I.wide_store_data = []
    R = lambda i: regs_of(ops[i]) if i < len(ops) else []
    base = op.replace("_e32", "").replace("_e64", "").replace("_dpp", "").replace("_sdwa", "")
    if op.startswith("v_mfma"):
        I.kind = "mfma"
        I.passes = 8 if "32x32" in op else 4
        I.writes = R(0); I.srcab = R(1) + R(2); I.srcc = R(3); I.reads = I.srcab + I.srcc
    elif op.startswith("v_"):
        I.kind = "valu"
        I.isdpp = ("row_" in tail) or ("quad_perm" in tail) or ("wave_" in tail) or op.endswith("_dpp")
        if base.startswith("v_cmp"):
            I.writes = R(0); I.reads = R(1) + R(2)
            if base.startswith("v_cmpx"): I.writes = I.writes + [("x", "exec")]
        elif base in ("v_permlane16_swap_b32", "v_permlane32_swap_b32", "v_swap_b32"):
            I.writes = R(0) + R(1); I.reads = R(0) + R(1)
        elif base in ("v_add_co_u32", "v_sub_co_u32", "v_subrev_co_u32"):
            I.writes = R(0) + R(1); I.reads = R(2) + R(3)
        elif base in ("v_addc_co_u32", "v_subb_co_u32"):
            I.writes = R(0) + R(1); I.reads = R(2) + R(3) + R(4)
        else:
            I.writes = R(0)
            I.reads = sum((R(i) for i in range(1, len(ops))), [])
            if base in ("v_fmac_f32", "v_dot2c_f32_bf16", "v_pk_fmac_f16", "v_fmac_f16", "v_mac_f32", "v_writelane_b32") or I.isdpp or "dst_unused:UNUSED_PRESERVE" in tail:
                I.reads = I.reads + R(0)
            if base == "v_cndmask_b32" and len(ops) == 3:
                I.reads = I.reads + [("x", "vcc")]
    elif op.startswith("ds_"):
        I.kind = "ds"
        if op.startswith("ds_read") or op.startswith("ds_bpermute") or op.startswith("ds_permute") or op.startswith("ds_swizzle") or "_rtn" in op:
            I.writes = R(0); I.reads = sum((R(i) for i in range(1, len(ops))), [])
        else:
            I.reads = sum((R(i) for i in range(len(ops))), [])
    elif op.startswith("buffer_") or op.startswith("global_"):
        I.kind = "vmem"
        islds = bool(re.search(r"\blds\b", tail)) or "load_lds" in op
        if op in ("buffer_wbl2", "buffer_inv"):
            pass
        elif islds:
            I.lds_dma = True
            I.reads = sum((R(i) for i in range(len(ops))), []) + [("x", "m0")]
        elif "_load" in op:
            I.writes = R(0); I.reads = sum((R(i) for i in range(1, len(ops))), [])
            if "d16" in op: I.reads = I.reads
        elif "atomic" in op and re.search(r"\bsc0\b", tail):
            if op.startswith("buffer_"):
                I.writes = R(0); I.reads = sum((R(i) for i in range(len(ops))), [])
            else:
                I.writes = R(0); I.reads = sum((R(i) for i in range(1, len(ops))), [])
        else:
            I.reads = sum((R(i) for i in range(len(ops))), [])
            if "x3" in op or "x4" in op:
                I.wide_store_data = R(0) if op.startswith("buffer_") else R(1)
    elif op.startswith("s_load") or op.startswith("s_buffer_load") or op in ("s_memtime", "s_memrealtime"):
        I.kind = "smem"
        I.writes = R(0); I.reads = sum((R(i) for i in range(1, len(ops))), [])
    elif op.startswith("s_"):
        I.kind = "salu"
        if op in ("s_waitcnt", "s_barrier", "s_nop", "s_endpgm", "s_branch", "s_sleep", "s_setprio") or op.startswith("s_cbranch"):
            I.kind = "ctl"
        elif op.startswith("s_cmp") or op.startswith("s_bitcmp"):
            I.reads = R(0) + R(1); I.writes = [("x", "scc")]
        else:
            I.writes = R(0); I.reads = sum((R(i) for i in range(1, len(ops))), [])
            if "saveexec" in op:
                I.writes = I.writes + [("x", "exec")]; I.reads = I.reads + [("x", "exec")]
            if op in ("s_addk_i32", "s_mulk_i32"): I.reads = I.reads + R(0)
    else:
        raise ValueError("unknown instr: " + text)
    return I

class Kern:
    def __init__(self, name):
        self.name = name
        self.out = []
        self.pos = 0
        self.w = {}
        self.crd = {}
        self.std = {}
        self.vm = []
        self.lg = []
        self.nins = 0
        self.maxv = -1; self.maxa = -1; self.maxs = -1
    def raw(self, s): self.out.append(s)
    def c(self, s): self.out.append("    ; " + s)
    def label(self, l): self.out.append(l + ":")
    def _emit(self, text, ws=1):
        self.out.append("    " + text); self.pos += ws; self.nins += 1
    def nop(self, n):
        while n > 0:
            k = min(n, 16); self._emit(f"s_nop {k-1}", k); n -= k
    def wait(self, vm=None, lg=None):
        parts = []
        if vm is not None:
            vm = max(0, vm)
            if vm < len(self.vm):
                if vm <= 62: parts.append(f"vmcnt({vm})")
                self.vm = self.vm[len(self.vm) - vm:] if vm else []
        if lg is not None:
            lg = max(0, lg)
            if lg < len(self.lg):
                if any(s for _, s in self.lg): lg = 0
                if lg <= 14: parts.append(f"lgkmcnt({lg})")
                self.lg = self.lg[len(self.lg) - lg:] if lg else []
        if parts: self._emit("s_waitcnt " + " ".join(parts))
    def wait_force(self, vm=None, lg=None):
        parts = []
        if vm is not None:
            parts.append(f"vmcnt({vm})"); self.vm = self.vm[len(self.vm) - vm:] if 0 < vm < len(self.vm) else ([] if vm == 0 else self.vm)
        if lg is not None:
            parts.append(f"lgkmcnt({lg})"); self.lg = self.lg[len(self.lg) - lg:] if 0 < lg < len(self.lg) else ([] if lg == 0 else self.lg)
        self._emit("s_waitcnt " + " ".join(parts))
    def wait_tag(self, tag):
        idx = [i for i, (_, t) in enumerate(self.vm) if t == tag]
        if idx: self.wait(vm=len(self.vm) - 1 - idx[-1])
    def barrier(self, lg=True):
        if lg: self.wait(lg=0)
        self._emit("s_barrier")
    def i(self, text, tag=None):
        I = parse(text)
        touched = set(I.reads) | set(I.writes)
        for (k, n) in touched:
            if k == "v": self.maxv = max(self.maxv, n)
            elif k == "a": self.maxa = max(self.maxa, n)
            elif k == "s": self.maxs = max(self.maxs, n)
        needvm = None; needlg = None
        d16 = I.kind == "vmem" and "d16" in I.op
        for idx, (dest, _) in enumerate(self.vm):
            chk = set(I.reads) if d16 else touched
            if dest & chk: needvm = len(self.vm) - 1 - idx
        for idx, (dest, _) in enumerate(self.lg):
            if dest & touched: needlg = len(self.lg) - 1 - idx
        if needvm is not None or needlg is not None:
            self.wait(vm=needvm, lg=needlg)
        need = self.pos
        def req(p, ws):
            nonlocal need
            need = max(need, p + 1 + ws)
        isvalu = I.kind == "valu"
        base = I.op.replace("_e32", "").replace("_e64", "")
        for r in I.reads:
            wr = self.w.get(r)
            if not wr: continue
            k, p, info = wr
            if k == "mfma":
                if I.kind == "mfma":
                    if r in I.srcab: req(p, 8 if info[0] == 4 else 12)
                    if r in I.srcc:
                        if tuple(I.srcc) == info[1] and I.passes == info[0]: pass
                        else: req(p, info[0] + 2)
                elif I.kind in ("valu", "vmem", "ds"): req(p, 8 if info[0] == 4 else 12)
            elif k == "valu":
                if r[0] in ("v", "a"):
                    if I.kind == "mfma": req(p, 2)
                    if isvalu:
                        if base in ("v_readfirstlane_b32", "v_readlane_b32"): req(p, 1)
                        if I.isdpp: req(p, 2)
                        if base.startswith("v_permlane"): req(p, 2)
                        if info == "trans" and base not in TRANS: req(p, 1)
                        if info == "opsel": req(p, 1)
                    if info == "dot":
                        pass
                else:
                    if isvalu: req(p, 4 if base in ("v_readlane_b32", "v_writelane_b32") else 2)
                    if I.kind == "vmem": req(p, 5)
                    if I.kind == "mfma": req(p, 4)
            elif k == "dot":
                same = (I.op == info) and (r in regs_of(I.ops[-1]) or r in I.writes) and r not in (regs_of(I.ops[1]) + regs_of(I.ops[2]))
                if not same and I.kind in ("valu", "mfma", "vmem", "ds"): req(p, 3)
            elif k == "salu":
                if r == ("x", "m0") and (I.lds_dma or "addtid" in I.op): req(p, 1)
        for r in I.writes:
            wr = self.w.get(r)
            if wr:
                k, p, info = wr
                if k == "mfma":
                    if I.kind == "mfma":
                        if not (tuple(I.writes) == info[1] and I.passes == info[0]): req(p, info[0] + 2)
                    else: req(p, 8 if info[0] == 4 else 12)
                if k == "dot" and I.op != info: req(p, 3)
            if isvalu or I.kind in ("vmem", "ds"):
                cr = self.crd.get(r)
                if cr: req(cr[1], 3 if cr[0] == 4 else 7)
            st = self.std.get(r)
            if st is not None: req(st, 2 if isvalu or I.kind == "mfma" else 1)
        if I.kind == "mfma":
            ex = self.w.get(("x", "exec"))
            if ex and ex[0] == "valu": req(ex[1], 4)
        if need > self.pos: self.nop(need - self.pos)
        p = self.pos
        if I.op == "s_nop": self._emit(text, int(I.ops[0], 0) + 1)
        else: self._emit(text)
        for r in I.writes:
            if I.kind == "mfma": self.w[r] = ("mfma", p, (I.passes, tuple(I.writes)))
            elif isvalu:
                if base.startswith("v_dot"): self.w[r] = ("dot", p, I.op)
                else:
                    info = "trans" if base in TRANS else ("opsel" if ("dst_sel" in I.rest or "op_sel:" in I.rest and not base.startswith("v_pk")) else None)
                    self.w[r] = ("valu", p, info)
            elif I.kind == "salu": self.w[r] = ("salu", p, None)
            else: self.w.pop(r, None)
        if I.kind == "mfma":
            for r in I.srcc: self.crd[r] = (I.passes, p)
        for r in I.wide_store_data: self.std[r] = p
        if I.kind == "vmem": self.vm.append((frozenset(I.writes), tag))
        elif I.kind == "ds": self.lg.append((frozenset(I.writes), False))
        elif I.kind == "smem": self.lg.append((frozenset(I.writes), True))
        elif I.op == "s_waitcnt": raise ValueError("use wait()")
    def __call__(self, text, tag=None):
        for t in text.strip().split("\n"):
            t = t.strip()
            if t: self.i(t, tag)
    stamps_on = False
    def stamp(self, name=""):
        if not self.stamps_on: return
        n = getattr(self, "nst", 0)
        self.i(f"s_memtime s[{64+2*n}:{65+2*n}]")
        self.lg[-1] = (frozenset(), True)
        self.nst = n + 1
        self.stnames = getattr(self, "stnames", []) + [name]
    def stamp_dump(self, off, wsptr):
        if not self.stamps_on: return
        n = self.nst
        self("s_mov_b64 exec, -1")
        self.i(f"s_memtime s[{64+2*n}:{65+2*n}]"); n += 1
        self.wait_force(lg=0)
        for i in range(n):
            self(f"s_sub_u32 s{65+2*i}, s{64+2*i}, s64\nv_mov_b32 v{16+i}, s{65+2*i}")
        self(f"v_mov_b32 v16, s64")
        self.i("s_memrealtime s[60:61]")
        self.wait_force(lg=0)
        for i in range(n, 16): self(f"v_mov_b32 v{16+i}, 0")
        self("v_mov_b32 v31, s60")
        self(f"s_lshl_b32 s62, s2, 2\ns_add_u32 s62, s62, s3\ns_lshl_b32 s62, s62, 6\ns_add_u32 s62, s62, {off}\nv_mov_b32 v15, s62\ns_mov_b64 exec, 1")
        for q in range(4): self(f"global_store_dwordx4 v15, v[{16+4*q}:{19+4*q}], s[{wsptr}:{wsptr+1}] offset:{16*q}")
    def hazard_flush(self):
        need = self.pos
        for r, (k, p, info) in self.w.items():
            ws = {"mfma": 12, "valu": 5, "dot": 3, "salu": 1}.get(k, 0)
            if k == "mfma": ws = 8 if info[0] == 4 else 12
            need = max(need, p + 1 + ws)
        for r, (ps, p) in self.crd.items(): need = max(need, p + 1 + (3 if ps == 4 else 7))
        for r, p in self.std.items(): need = max(need, p + 3)
        if need > self.pos: self.nop(need - self.pos)
    def save(self):
        return copy.deepcopy((self.pos, self.w, self.crd, self.std, self.vm, self.lg))
    def restore(self, st):
        self.pos, self.w, self.crd, self.std, self.vm, self.lg = copy.deepcopy(st)
    def restore_mem(self, st):
        self.vm, self.lg = copy.deepcopy(st[4]), copy.deepcopy(st[5])
    def text(self):
        return "\n".join([f".globl {self.name}", ".p2align 8", f".type {self.name},@function", f"{self.name}:"] + self.out) + "\n"
    def desc(self, force_acc=None):
        nv = self.maxv + 1
        acc = max(4, (nv + 3) // 4 * 4)
        if force_acc: acc = force_acc
        tot = acc + self.maxa + 1 if self.maxa >= 0 else nv
        return "\n".join([".p2align 6", f".amdhsa_kernel {self.name}", f"  .amdhsa_next_free_vgpr {tot}", f"  .amdhsa_next_free_sgpr {max(self.maxs + 1, 16)}",
            f"  .amdhsa_accum_offset {acc}", "  .amdhsa_group_segment_fixed_size 0", "  .amdhsa_kernarg_size 104", "  .amdhsa_user_sgpr_count 2",
            "  .amdhsa_user_sgpr_kernarg_segment_ptr 1", "  .amdhsa_system_sgpr_workgroup_id_x 1",
            "  .amdhsa_float_denorm_mode_32 3", "  .amdhsa_float_denorm_mode_16_64 3", ".end_amdhsa_kernel"]) + "\n"
```

```python
from asmgen import *
from layout import *

NB, NA, NC, ND, NE = 96, 144, 54, 96, 8
K0_GRID = NB + NA + NC + ND + NE
K0_LDS = 59904

def srd(k, dst, lo, size):
    k(f"s_mov_b32 s{dst}, s{lo}\ns_mov_b32 s{dst+1}, s{lo+1}\ns_mov_b32 s{dst+2}, {size}\ns_mov_b32 s{dst+3}, 0x20000")

def gen_k0(stamp=None):
    k = Kern("k0_kernel")
    k.stamps_on = stamp is not None
    k(f"s_cmp_ge_u32 s2, {K0_GRID}")
    k.i("s_cbranch_scc1 K0_END")
    k.stamp("start")
    def fin():
        if stamp is not None:
            k.stamp("issued_st")
            k.wait(vm=0)
            k.stamp_dump(stamp, 32)
            k.nst = 1
        k.i("s_endpgm")
    k("s_load_dwordx8 s[16:23], s[0:1], 0\ns_load_dwordx8 s[24:31], s[0:1], 32\ns_load_dwordx2 s[32:33], s[0:1], 96")
    k("v_and_b32 v1, 63, v0\nv_lshrrev_b32 v2, 6, v0")
    k("v_readfirstlane_b32 s3, v2")
    k("v_and_b32 v3, 15, v0\nv_bfe_u32 v4, v0, 4, 2")
    srd(k, 8, 32, WS_SIZE)
    srd(k, 36, 16, XBYTES)
    srd(k, 40, 18, 576 * 1728 * 2)
    srd(k, 44, 20, 32 * 324 * 2)
    srd(k, 48, 22, 576 * 576 * 2)
    srd(k, 52, 26, XBYTES)
    srd(k, 56, 28, XBYTES)
    srd(k, 60, 30, 576 * 4 * 2)
    k.hazard_flush()
    st = k.save()
    k(f"s_cmp_ge_u32 s2, {NB+NA+NC+ND}"); k.i("s_cbranch_scc1 K0_E")
    k(f"s_cmp_ge_u32 s2, {NB+NA+NC}"); k.i("s_cbranch_scc1 K0_D")
    k(f"s_cmp_ge_u32 s2, {NB+NA}"); k.i("s_cbranch_scc1 K0_C")
    k(f"s_cmp_ge_u32 s2, {NB}"); k.i("s_cbranch_scc1 K0_A")

    k.c("role B")
    RAW, T = 0, 23056
    k("s_mov_b32 s4, 0x2aaaaaab\ns_mul_hi_u32 s5, s2, s4")
    k("s_mul_i32 s6, s5, 6\ns_sub_u32 s6, s2, s6")
    k("v_mul_u32_u24 v5, 4370, v1\nv_lshrrev_b32 v5, 16, v5")
    k("v_mul_u32_u24 v6, 15, v5\nv_sub_u32 v6, v1, v6")
    k("v_mul_u32_u24 v7, 13108, v6\nv_lshrrev_b32 v7, 16, v7")
    k("v_mul_u32_u24 v8, 5, v7\nv_sub_u32 v8, v6, v8")
    k("v_mul_u32_u24 v5, 3456, v5\nv_mul_u32_u24 v7, 1152, v7\nv_lshlrev_b32 v8, 4, v8\nv_add3_u32 v5, v5, v7, v8")
    k("s_mul_i32 s7, s6, 96\ns_mul_i32 s12, s3, 24\ns_add_u32 s7, s7, s12\ns_mul_i32 s7, s7, 3456\ns_mul_i32 s12, s5, 72\ns_add_u32 s7, s7, s12")
    k("s_mul_i32 s12, s3, 5760")
    k("s_mov_b64 exec, 0x0fffffffffffffff" if False else "s_mov_b32 exec_hi, 0x0fffffff")
    for i in range(6):
        k("s_mov_b32 m0, s12")
        k("buffer_load_dwordx4 v5, s[40:43], s7 offen lds", tag="raw")
        if i < 5: k("s_add_u32 s7, s7, 13824\ns_add_u32 s12, s12, 960")
    k("s_mov_b32 exec_hi, -1")
    k("s_mul_i32 s13, s5, 1296\nv_lshlrev_b32 v9, 1, v0")
    for i in range(3):
        k(f"buffer_load_ushort v{10+i}, v9, s[44:47], s13 offen offset:{512*i}")
    k("v_mov_b32 v16, 0\nv_mov_b32 v17, 0\nv_mov_b32 v18, 0\nv_mov_b32 v19, 0\nv_lshlrev_b32 v14, 4, v0")
    for i in range(9):
        k(f"ds_write_b128 v14, v[16:19] offset:{23040 + 4096*i}")
    for i in range(3):
        e, hh, rem, d, f, ad = 20, 21, 22, 23, 24, 26 + i
        k(f"v_add_u32 v{e}, {256*i}, v0")
        k(f"v_cmp_le_u32 vcc, 324, v{e}")
        k(f"v_cndmask_b32 v{hh}, 0, 1, vcc")
        k(f"v_mul_u32_u24 v{rem}, 324, v{hh}\nv_sub_u32 v{rem}, v{e}, v{rem}")
        k(f"v_mul_u32_u24 v{d}, 3641, v{rem}\nv_lshrrev_b32 v{d}, 16, v{d}")
        k(f"v_mul_u32_u24 v{f}, 18, v{d}\nv_sub_u32 v{f}, v{rem}, v{f}")
        k(f"v_lshrrev_b32 v25, 2, v{f}\nv_lshlrev_b32 v25, 4, v25\nv_and_b32 v{f}, 3, v{f}\nv_add_u32 v25, v25, v{f}\nv_lshl_add_u32 v25, v{hh}, 3, v25")
        k(f"v_mul_u32_u24 v25, 272, v25")
        k(f"v_mul_u32_u24 v{hh}, 18, v{hh}\nv_add_u32 v{hh}, v{hh}, v{d}\nv_lshl_add_u32 v{ad}, v{hh}, 1, v25")
    k("v_cmp_le_u32 vcc, 18, v0\nv_cndmask_b32 v21, 0, 1, vcc\nv_mul_u32_u24 v22, 18, v21\nv_sub_u32 v22, v0, v22")
    k("v_cmp_le_u32 vcc, 9, v22\nv_cndmask_b32 v23, 0, 1, vcc\nv_mul_u32_u24 v24, 9, v23\nv_sub_u32 v24, v22, v24\nv_add_u32 v24, 18, v24")
    k("v_lshl_add_u32 v23, v21, 1, v23")
    k("v_lshrrev_b32 v25, 2, v24\nv_lshlrev_b32 v25, 4, v25\nv_and_b32 v24, 3, v24\nv_add_u32 v25, v25, v24\nv_lshl_add_u32 v25, v23, 2, v25")
    k("v_mul_u32_u24 v25, 272, v25\nv_lshl_add_u32 v29, v0, 1, v25\nv_mov_b32 v30, 0x3f80")
    k.barrier()
    for i in range(3):
        if i == 2:
            k("v_cmp_gt_u32 vcc, 136, v0\ns_and_saveexec_b64 s[14:15], vcc")
        k(f"ds_write_b16 v{26+i}, v{10+i} offset:{T}\nds_write_b16 v{26+i}, v{10+i} offset:{T + 4*272 + 80}")
    k("s_mov_b64 exec, s[14:15]")
    k("v_cmp_gt_u32 vcc, 36, v0\ns_and_saveexec_b64 s[14:15], vcc")
    k(f"ds_write_b16 v29, v30 offset:{T + 160}")
    k("s_mov_b64 exec, s[14:15]")
    k.wait(vm=0)
    k.stamp("loaded")
    k.barrier()
    k("s_lshl_b32 s12, s3, 5\nv_add_u32 v14, s12, v3\nv_mul_u32_u24 v14, 272, v14\nv_lshl_add_u32 v14, v4, 4, v14")
    for tt in range(2):
        for t in range(4):
            k(f"ds_read_b128 v[{32+16*tt+4*t}:{35+16*tt+4*t}], v14 offset:{T + tt*4352 + t*64}")
    k("v_lshrrev_b32 v15, 2, v3\nv_lshlrev_b32 v15, 3, v15\nv_and_b32 v20, 3, v3\nv_add_u32 v15, v15, v20\nv_mul_u32_u24 v15, 240, v15\nv_lshl_add_u32 v15, v4, 4, v15")
    for r in range(64, 68): k(f"v_mov_b32 v{r}, 0x3f803f80")
    for r in range(68, 76): k(f"v_mov_b32 v{r}, 0")
    k("v_cmp_eq_u32 vcc, 3, v20\ns_cmp_eq_u32 s3, 3\ns_cselect_b64 s[34:35], vcc, 0")
    k(f"s_mul_i32 s7, s5, {WQ_HP}\ns_mul_i32 s12, s6, 21504\ns_add_u32 s7, s7, s12\ns_lshl_b32 s12, s3, 11\ns_add_u32 s7, s7, s12")
    k("s_add_u32 s13, s7, 1024\ns_cmp_eq_u32 s3, 3\ns_cselect_b32 s13, 0x7ff00000, s13")
    k("v_lshlrev_b32 v21, 4, v1")
    for ks in range(3):
        for hf in range(2):
            ab = 80 + 16 * hf
            for t in range(4):
                k(f"ds_read_b128 v[{ab+4*t}:{ab+4*t+3}], v15 offset:{(32*ks+4*hf)*240 + 64*t}")
        for hf in range(2):
            ab = 80 + 16 * hf
            for tt in range(2):
                acc = 112 + 8 * tt + 4 * hf
                for t in range(4):
                    c = "0" if t == 0 else V(acc, 4)
                    k(f"v_mfma_f32_16x16x32_bf16 {V(acc,4)}, {V(ab+4*t,4)}, {V(32+16*tt+4*t,4)}, {c}")
        for tt in range(2):
            acc = 112 + 8 * tt; o = 128 + 4 * tt
            for q in range(4):
                k(f"v_cvt_pk_bf16_f32 v{o+q}, v{acc+2*q}, v{acc+2*q+1}")
            if tt == 0:
                for q in range(4): k(f"v_cndmask_b32 v{o+q}, v{o+q}, v64, s[34:35]")
            k(f"v_mfma_f32_16x16x32_bf16 {V(68+4*tt,4)}, {V(64,4)}, {V(o,4)}, {V(68+4*tt,4)}")
            k(f"buffer_store_dwordx4 {V(o,4)}, v21, s[8:11], s{7 if tt == 0 else 13} offen")
        if ks < 2: k("s_add_u32 s7, s7, 7168\ns_add_u32 s13, s13, 7168")
    k(f"s_mul_i32 s7, s2, 448\ns_lshl_b32 s12, s3, 7\ns_add_u32 s7, s7, s12\ns_add_u32 s7, s7, {OFF_CS}")
    k("s_add_u32 s13, s7, 64\ns_cmp_eq_u32 s3, 3\ns_cselect_b32 s13, 0x7ff00000, s13")
    k("v_lshlrev_b32 v21, 2, v1\ns_mov_b64 exec, 0xffff")
    k("buffer_store_dword v68, v21, s[8:11], s7 offen\nbuffer_store_dword v72, v21, s[8:11], s13 offen")
    fin()

    k.label("K0_A"); k.restore(st)
    k(f"s_sub_u32 s4, s2, {NB}\ns_mov_b32 s5, 0x1c71c71d\ns_mul_hi_u32 s5, s4, s5")
    k("s_mul_i32 s6, s5, 9\ns_sub_u32 s6, s4, s6")
    k("v_and_b32 v5, 7, v1\nv_lshrrev_b32 v6, 3, v0")
    k("s_lshl_b32 s7, s5, 7\nv_lshlrev_b32 v7, 2, v6\nv_add_u32 v7, s7, v7\nv_mul_u32_u24 v7, 1152, v7")
    k("s_lshl_b32 s12, s6, 7\nv_lshlrev_b32 v8, 4, v5\nv_add3_u32 v7, v7, v8, s12")
    k("v_subrev_u32 v9, 3456, v7")
    KR = 16
    for j in range(3): k(f"buffer_load_dwordx4 {V(KR+4*j,4)}, v9, s[52:55], 0 offen offset:{1152*j}")
    for j in range(4): k(f"buffer_load_dwordx4 {V(KR+12+4*j,4)}, v7, s[52:55], 0 offen offset:{1152*j}")
    k("s_lshl_b32 s12, s6, 9\nv_lshlrev_b32 v10, 6, v5")
    for j in range(4): k(f"buffer_load_dwordx4 {V(60+4*j,4)}, v10, s[60:63], s12 offen offset:{16*j}")
    for j in range(4): k(f"buffer_load_dwordx4 {V(44+4*j,4)}, v7, s[56:59], 0 offen offset:{1152*j}")
    k("v_sub_u32 v11, 31, v6\nv_lshrrev_b32 v12, 1, v11\nv_xor_b32 v12, v12, v5\nv_lshlrev_b32 v12, 4, v12\nv_and_b32 v11, 1, v11\nv_lshl_add_u32 v12, v11, 3, v12")
    k("v_lshl_add_u32 v12, v5, 11, v12")
    k("s_mov_b32 s13, 0xffff0000")
    for c in range(8):
        k(f"v_lshlrev_b32 v{80+c}, 16, v{60+2*c}\nv_and_b32 v{88+c}, s13, v{60+2*c}\nv_lshlrev_b32 v{96+c}, 16, v{61+2*c}\nv_and_b32 v{104+c}, s13, v{61+2*c}")
    k.wait(vm=0)
    k.stamp("loaded")
    for r in range(7):
        for q in range(4):
            k(f"v_lshlrev_b32 v{112+8*r+2*q}, 16, v{KR+4*r+q}\nv_and_b32 v{113+8*r+2*q}, s13, v{KR+4*r+q}")
    for t in range(4):
        for q in range(4):
            o = V(168+8*t+2*q, 2)
            k(f"v_pk_mul_f32 {o}, {V(112+8*(t)+2*q,2)}, {V(104+2*q,2)}")
            for lag in (2, 1, 0):
                k(f"v_pk_fma_f32 {o}, {V(112+8*(3+t-lag)+2*q,2)}, {V(80+8*lag+2*q,2)}, {o}")
    for t in range(4):
        for q in range(4):
            k(f"v_lshlrev_b32 v{112+8*t+2*q}, 16, v{44+4*t+q}\nv_and_b32 v{113+8*t+2*q}, s13, v{44+4*t+q}")
    for t in range(4):
        for q in range(4):
            o = V(168+8*t+2*q, 2)
            k(f"v_pk_mul_f32 {o}, {o}, {V(112+8*t+2*q,2)}")
    for c in range(8):
        k(f"v_cvt_pk_bf16_f32 v{16+2*c}, v{168+24+c}, v{168+16+c}\nv_cvt_pk_bf16_f32 v{17+2*c}, v{168+8+c}, v{168+c}")
        k(f"ds_write_b64 v12, {V(16+2*c,2)} offset:{256*c}")
    k.barrier()
    k("s_lshl_b32 s12, s3, 1\nv_xor_b32 v13, s12, v3\ns_add_u32 s12, s12, 1\nv_xor_b32 v14, s12, v3")
    k("s_lshl_b32 s12, s3, 12\nv_lshlrev_b32 v15, 8, v4\nv_add_u32 v15, s12, v15")
    k("v_lshl_add_u32 v13, v13, 4, v15\nv_lshl_add_u32 v14, v14, 4, v15")
    for i in range(4):
        k(f"ds_read_b128 {V(32+4*i,4)}, v{13 if i < 2 else 14} offset:{1024*i}")
    k("v_lshlrev_b32 v15, 12, v4\nv_lshl_add_u32 v15, v3, 4, v15")
    k(f"s_lshl_b32 s12, s6, 18\ns_lshl_b32 s13, s3, 16\ns_add_u32 s12, s12, s13\ns_lshl_b32 s13, s5, 8\ns_sub_u32 s12, s12, s13\ns_add_u32 s12, s12, {OFF_UT + 3840}")
    for i in range(4):
        k(f"buffer_store_dwordx4 {V(32+4*i,4)}, v15, s[8:11], s12 offen")
        if i < 3: k("s_add_u32 s12, s12, 16384")
    fin()

    k.label("K0_C"); k.restore(st)
    k(f"s_sub_u32 s4, s2, {NB+NA}\ns_mov_b32 s5, 0x55555556\ns_mul_hi_u32 s5, s4, s5")
    k("s_mul_i32 s6, s5, 3\ns_sub_u32 s6, s4, s6")
    k("s_lshl_b32 s7, s5, 2\nv_add_u32 v5, s7, v4")
    k("v_mul_u32_u24 v6, 3641, v5\nv_lshrrev_b32 v6, 16, v6")
    k("v_mul_u32_u24 v7, 18, v6\nv_sub_u32 v7, v5, v7")
    k("v_cmp_le_u32 vcc, 9, v7\nv_cndmask_b32 v8, 0, 9, vcc\nv_sub_u32 v7, v7, v8")
    k("v_mul_u32_u24 v6, 144, v6\nv_add_u32 v6, v6, v8")
    for j in range(8):
        k(f"v_lshlrev_b32 v9, 3, v7\nv_add_u32 v9, {j}, v9")
        k("v_mul_u32_u24 v10, 7282, v9\nv_lshrrev_b32 v10, 16, v10")
        k("v_mul_u32_u24 v10, 9, v10\nv_add3_u32 v9, v9, v10, v6")
        k(f"v_mul_u32_u24 v9, 1152, v9\nv_lshl_add_u32 v{16+j}, v3, 1, v9")
    k("s_mul_i32 s7, s6, 12\ns_mul_i32 s12, s3, 3\ns_add_u32 s7, s7, s12")
    k("s_lshl_b32 s12, s7, 5")
    for i in range(3):
        for j in range(8):
            k(f"buffer_load_ushort v{48+8*i+j}, v{16+j}, s[48:51], s12 offen offset:{32*i}")
    k(f"s_mul_i32 s7, s7, 18\ns_add_u32 s7, s7, s5\ns_lshl_b32 s7, s7, 10\ns_add_u32 s7, s7, {OFF_WO}\nv_lshlrev_b32 v5, 4, v1")
    k.wait(vm=0)
    k.stamp("loaded")
    for i in range(3):
        for q in range(4): k(f"v_lshl_or_b32 v{32+4*i+q}, v{48+8*i+2*q+1}, 16, v{48+8*i+2*q}")
        k(f"buffer_store_dwordx4 {V(32+4*i,4)}, v5, s[8:11], s7 offen")
        if i < 2: k("s_add_u32 s7, s7, 18432")
    fin()

    k.label("K0_D"); k.restore(st)
    k(f"s_sub_u32 s4, s2, {NB+NA+NC}\ns_lshl_b32 s4, s4, 2\ns_add_u32 s4, s4, s3\ns_mov_b32 s5, 0x55555556\ns_mul_hi_u32 s5, s4, s5")
    k("s_mul_i32 s6, s5, 3\ns_sub_u32 s6, s4, s6\ns_mul_i32 s6, s6, 6")
    k("v_lshrrev_b32 v5, 2, v1\nv_and_b32 v6, 3, v1\nv_mul_u32_u24 v7, 1152, v5\nv_lshl_add_u32 v7, v6, 4, v7")
    k("s_mul_i32 s7, s5, 18432\ns_lshl_b32 s12, s6, 6\ns_add_u32 s7, s7, s12")
    for i in range(6): k(f"buffer_load_dwordx4 {V(16+4*i,4)}, v7, s[36:39], s7 offen offset:{64*i}")
    k("s_mul_i32 s12, s3, 6528\nv_mul_u32_u24 v8, 272, v6\nv_lshl_add_u32 v8, v5, 4, v8\nv_add_u32 v8, s12, v8")
    k("v_mul_u32_u24 v9, 272, v4\nv_lshl_add_u32 v9, v3, 4, v9\nv_add_u32 v9, s12, v9")
    k.wait(vm=0)
    k.stamp("loaded")
    for i in range(6): k(f"ds_write_b128 v8, {V(16+4*i,4)} offset:{1088*i}")
    for i in range(6): k(f"ds_read_b128 {V(40+4*i,4)}, v9 offset:{1088*i}")
    k(f"s_mul_i32 s7, s5, 18\ns_add_u32 s7, s7, s6\ns_lshl_b32 s7, s7, 10\ns_add_u32 s7, s7, {OFF_XF0}\ns_add_u32 s12, s7, 4096\nv_lshlrev_b32 v5, 4, v1")
    for i in range(6):
        k(f"buffer_store_dwordx4 {V(40+4*i,4)}, v5, s[8:11], s{7 if i < 4 else 12} offen offset:{1024*(i%4)}")
    fin()

    k.label("K0_E"); k.restore(st)
    k(f"s_sub_u32 s4, s2, {NB+NA+NC+ND}\ns_lshl_b32 s4, s4, 2\ns_add_u32 s4, s4, s3")
    k.stamp("loaded")
    for r in range(16, 20): k(f"v_mov_b32 v{r}, 0")
    for r in range(20, 24): k(f"v_mov_b32 v{r}, -1")
    k(f"v_lshlrev_b32 v5, 4, v1\ns_mul_i32 s7, s4, 6144\ns_add_u32 s7, s7, {OFF_KV}\ns_add_u32 s12, s7, 4096")
    for i in range(6): k(f"buffer_store_dwordx4 v[16:19], v5, s[8:11], s{7 if i < 4 else 12} offen offset:{1024*(i%4)}")
    k(f"s_lshl_b32 s7, s4, 12\ns_add_u32 s7, s7, {OFF_ST}")
    for i in range(4): k(f"buffer_store_dwordx4 v[20:23], v5, s[8:11], s7 offen offset:{1024*i}")
    fin()
    k.label("K0_END")
    k.i("s_endpgm")
    return k
```

```python
from asmgen import *
from layout import *
from k0 import srd
import os

K1_LDS = 162816
PHK, VIMG, CSL = 129024, 149504, 161792
KVS = 0
CONVB, CONVW = 16384, 21248
LOG2E = 0x3fb8aa3b
XF = lambda nt, s: 16 + (2 * s + nt) * 4
ACC = lambda nt, mt: 160 + (nt * 7 + mt) * 4
SQ = lambda nt: 244 + 4 * nt
SC1 = " sc1" if os.environ.get("SC1", "1") == "1" else ""

def merge(k, a, b, ra=1, rb=1):
    a = list(a); b = list(b)
    def emit(it):
        if callable(it): it()
        elif isinstance(it, str): k(it)
        else:
            for t in it: (t() if callable(t) else k(t))
    while a or b:
        for _ in range(ra):
            if a: emit(a.pop(0))
        for _ in range(rb):
            if b: emit(b.pop(0))

def softmax_stream(T, P, EP, EN, sc, tmp):
    mx, mn, bp, bn, sp, sn = tmp, tmp + 1, tmp + 2, tmp + 4, tmp + 6, tmp + 8
    o = []
    o += [f"v_max3_f32 v{mx}, v{T}, v{T+1}, v{T+2}", f"v_min3_f32 v{mn}, v{T}, v{T+1}, v{T+2}"]
    for q in range(7):
        o += [f"v_max3_f32 v{mx}, v{mx}, v{T+3+2*q}, v{T+4+2*q}", f"v_min3_f32 v{mn}, v{mn}, v{T+3+2*q}, v{T+4+2*q}"]
    o += [f"v_max_f32 v{mx}, v{mx}, v{T+17}", f"v_min_f32 v{mn}, v{mn}, v{T+17}"]
    o += [f"v_mul_f32 v{bp}, v{mx}, v{sc}", f"v_mul_f32 v{bn}, v{mn}, v{sc}"]
    for q in range(9):
        o += [f"v_pk_fma_f32 {V(EP+2*q,2)}, {V(T+2*q,2)}, {V(sc,2)}, {V(bp,2)} op_sel_hi:[1,1,0] neg_lo:[0,0,1] neg_hi:[0,0,1]"]
        o += [f"v_pk_fma_f32 {V(EN+2*q,2)}, {V(T+2*q,2)}, {V(sc,2)}, {V(bn,2)} op_sel_hi:[1,1,0] neg_lo:[1,0,0] neg_hi:[1,0,0]"]
    for q in range(18):
        o += [f"v_exp_f32 v{EP+q}, v{EP+q}", f"v_exp_f32 v{EN+q}, v{EN+q}"]
        if q == 3: o += [f"v_pk_add_f32 {V(sp,2)}, {V(EP,2)}, {V(EP+2,2)}", f"v_pk_add_f32 {V(sn,2)}, {V(EN,2)}, {V(EN+2,2)}"]
        if q > 3 and q % 2 == 1:
            j = q // 2
            o += [f"v_pk_add_f32 {V(sp,2)}, {V(sp,2)}, {V(EP+2*j,2)}", f"v_pk_add_f32 {V(sn,2)}, {V(sn,2)}, {V(EN+2*j,2)}"]
    o += [f"v_add_f32 v{sp}, v{sp}, v{sp+1}", f"v_add_f32 v{sn}, v{sn}, v{sn+1}", f"v_rcp_f32 v{sp}, v{sp}", f"v_rcp_f32 v{sn}, v{sn}"]
    for q in range(9):
        o += [f"v_pk_mul_f32 {V(EP+2*q,2)}, {V(EP+2*q,2)}, {V(sp,2)} op_sel_hi:[1,0]", f"v_pk_mul_f32 {V(EN+2*q,2)}, {V(EN+2*q,2)}, {V(sn,2)} op_sel_hi:[1,0]"]
    for q in range(9):
        o += [f"v_cvt_pk_bf16_f32 v{P+q}, v{EP+2*q}, v{EP+2*q+1}", f"v_cvt_pk_bf16_f32 v{P+9+q}, v{EN+2*q}, v{EN+2*q+1}"]
    return o

def gen_qkv(name, xoff, kvoff, conv, stamp=None):
    k = Kern(name)
    L = name.upper()
    k.stamps_on = stamp is not None
    k("s_cmp_ge_u32 s2, 256")
    k.i(f"s_cbranch_scc1 {L}_END")
    k.stamp("start")
    k("s_load_dwordx2 s[16:17], s[0:1], 96")
    if conv: k("s_load_dwordx4 s[24:27], s[0:1], 64")
    k("v_and_b32 v1, 63, v0\nv_lshrrev_b32 v5, 6, v0\nv_lshlrev_b32 v2, 4, v1")
    k("v_readfirstlane_b32 s3, v5")
    k("v_and_b32 v3, 15, v0\nv_bfe_u32 v4, v0, 4, 2")
    k("s_and_b32 s4, s2, 7\ns_lshr_b32 s5, s2, 3")
    k("s_lshr_b32 s20, s4, 1\ns_lshl_b32 s20, s20, 2\ns_lshr_b32 s6, s5, 3\ns_add_u32 s20, s20, s6")
    k("s_and_b32 s21, s4, 1\ns_lshl_b32 s21, s21, 3\ns_and_b32 s6, s5, 7\ns_add_u32 s21, s21, s6")
    k(f"s_lshl_b32 s6, s20, 3\ns_lshl_b32 s7, s3, 1\ns_add_u32 s6, s6, s7\ns_mul_i32 s22, s6, 18432\ns_add_u32 s22, s22, {xoff}\ns_add_u32 s23, s22, 18432")
    k(f"s_mul_i32 s29, s3, 5376\ns_mul_i32 s28, s21, {WQ_HP}\ns_add_u32 s28, s28, s29")
    k(f"s_mul_i32 s6, s21, 2688\ns_add_u32 s6, s6, {OFF_CS}\nv_lshlrev_b32 v5, 2, v0")
    srd(k, 8, 16, WS_SIZE)
    if conv:
        srd(k, 12, 24, 576 * 4096)
        k(f"s_mul_i32 s40, s2, 3\ns_add_u32 s40, s40, s3\ns_cmp_lt_u32 s3, 3\ns_cselect_b32 s48, 1, 0\ns_cmp_lt_u32 s2, 192\ns_cselect_b32 s48, s48, 0")
        k("s_min_u32 s40, s40, 575\ns_lshr_b32 s45, s40, 1\ns_lshl_b32 s45, s45, 2\ns_load_dword s46, s[26:27], s45")

    def w_loads(st):
        def mk(i):
            def f():
                if i == 0: k(f"s_add_u32 s30, s29, {st*21504}\ns_add_u32 s31, s28, {st*21504 + OFF_WQ}\ns_mov_b32 m0, s30")
                if i == 4: k("s_add_u32 s30, s30, 4096\ns_add_u32 s31, s31, 4096\ns_mov_b32 m0, s30")
                if i == 5: k("s_mov_b64 exec, 0xffff")
                k(f"buffer_load_dwordx4 v2, s[8:11], s31 offen offset:{1024*(i%4)} lds", tag=f"w{st}")
                if i == 5: k("s_mov_b64 exec, -1")
            return f
        return [mk(i) for i in range(6)]
    def x_loads(st):
        def mk(s, nt):
            def f():
                if s % 4 == 0 and s > 0: k(f"s_add_u32 s{22+nt}, s{22+nt}, 4096")
                k(f"buffer_load_dwordx4 {V(XF(nt,s),4)}, v2, s[8:11], s{22+nt} offen offset:{1024*(s%4)}")
            return f
        return [mk(s, nt) for s in range(3 * st, 3 * st + 3) for nt in range(2)]
    def stage_loads(st):
        a = w_loads(st); b = x_loads(st); out = []
        while a or b:
            if a: out.append(a.pop(0))
            if b: out.append(b.pop(0))
        return out
    for f in stage_loads(0): f()
    for p in range(6): k(f"buffer_load_dword v{232+p}, v5, s[8:11], s6 offen offset:{448*p}")
    for f in stage_loads(1): f()
    later = {st: stage_loads(st + 2) for st in range(4)}
    if conv:
        k("s_and_b32 s45, s40, 1\ns_cmp_eq_u32 s45, 0\ns_cselect_b32 s45, 16, 0\ns_lshl_b32 s46, s46, s45\ns_and_b32 s46, s46, 0xffff0000")
        k(f"s_lshl_b32 s42, s40, 12\ns_add_u32 s44, s42, {OFF_UT}")
        HD = lambda i: 16 + 6 * i
        cl = []
        for i in range(4):
            cl.append(lambda i=i: k(f"buffer_load_dwordx4 {V(HD(i),4)}, v2, s[12:15], s42 offen offset:{1024*i}"))
            cl.append(lambda i=i: k(f"buffer_load_dwordx2 {V(HD(i)+4,2)}, v2, s[12:15], s42 offen offset:{1024*i+16}"))
        for i in range(4):
            cl.append(lambda i=i: k(f"buffer_load_dwordx4 {V(40+4*i,4)}, v2, s[8:11], s44 offen offset:{1024*i}"))
        later[4] = cl
    else:
        k.wait(lg=0)

    k("v_add_u32 v6, 64512, v2")
    def a_reads(s):
        fs = []
        for mt in range(7):
            c = s * 7 + mt
            va, off = ("v2", c * 1024) if c < 63 else ("v6", (c - 63) * 1024)
            fs.append(f"ds_read_b128 {A(28*(s&1)+4*mt,4)}, {va} offset:{off}")
        return fs
    def sync_stage(st):
        k.wait_tag(f"w{st}")
        k.barrier(lg=False)
    k.stamp("issued")
    sync_stage(0)
    k.stamp("stage0")
    for t in a_reads(0): k(t)
    for s in range(18):
        fill = []
        if s + 1 < 18:
            if (s + 1) % 3 == 0: sync_stage((s + 1) // 3)
            fill += a_reads(s + 1)
        lds = later.get(s // 3, [])
        mine = [lds.pop(0) for _ in range(min(4, len(lds)))]
        n = 0
        for nt in range(2):
            k(f"v_mfma_f32_16x16x32_bf16 {V(SQ(nt),4)}, {V(XF(nt,s),4)}, {V(XF(nt,s),4)}, " + ("0" if s == 0 else V(SQ(nt), 4)))
        for mt in range(7):
            for nt in range(2):
                c = "0" if s == 0 else V(ACC(nt, mt), 4)
                k(f"v_mfma_f32_16x16x32_bf16 {V(ACC(nt,mt),4)}, {A(28*(s&1)+4*mt,4)}, {V(XF(nt,s),4)}, {c}")
                if fill and n % 2 == 0: k(fill.pop(0))
                if mine and n % 3 == 1: mine.pop(0)()
                n += 1
        for f in mine: f()
        if s == 3:
            k("v_add_f32 v232, v232, v233\nv_add_f32 v234, v234, v235\nv_add_f32 v236, v236, v237\nv_add_f32 v232, v232, v234\nv_add_f32 v232, v232, v236")
            k(f"v_add_u32 v5, {CSL}, v5\nds_write_b32 v5, v232")
        if s == 7:
            k("v_lshrrev_b32 v8, 1, v4\nv_and_b32 v9, 1, v4")
            k(f"v_lshlrev_b32 v7, 5, v8\nv_add_u32 v7, {CSL}, v7")
            k("s_lshl_b32 s6, s3, 5\nv_lshl_add_u32 v10, v9, 4, v3\nv_add_u32 v15, s6, v10")
            k(f"v_mul_u32_u24 v11, 10240, v8\nv_mul_u32_u24 v12, 80, v15\nv_add_u32 v11, v11, v12\nv_add_u32 v11, {PHK}, v11")
            k(f"v_mul_u32_u24 v12, 6144, v8\nv_mul_u32_u24 v13, 48, v15\nv_add_u32 v12, v12, v13\nv_add_u32 v12, {VIMG}, v12")
            k("v_mul_u32_u24 v13, 2304, v8\nv_lshl_add_u32 v14, v10, 3, v13\nv_lshl_add_u32 v13, v10, 4, v13")
            k(f"s_lshl_b32 s6, s20, 2\ns_add_u32 s6, s6, s3\ns_lshl_b32 s6, s6, 5\ns_lshl_b32 s7, s21, 1\ns_add_u32 s6, s6, s7\ns_mul_i32 s50, s6, 2304\ns_add_u32 s50, s50, {OFF_PQ}")
            k(f"s_mov_b32 s32, 0x3ae38e39\ns_mov_b32 s33, 0x3727c5ac\ns_mov_b32 s34, {LOG2E}")
            for r in range(4):
                lo = (1 << r) | (1 << (20 + r)); hi = (1 << (8 + r)) | (1 << (28 + r))
                k(f"s_mov_b32 s{52+2*r}, {lo:#x}\ns_mov_b32 s{53+2*r}, {hi:#x}")
        if s == 8:
            k("s_lshr_b32 s6, s3, 1\ns_and_b32 s7, s3, 1")
            k("v_lshrrev_b32 v238, 2, v3\nv_and_b32 v239, 3, v3\nv_lshl_add_u32 v240, v4, 3, v238")
            k(f"s_mul_i32 s31, s6, 6144\ns_lshl_b32 s35, s7, 5\ns_add_u32 s35, s31, s35\ns_add_u32 s35, s35, {VIMG}")
            k("v_mul_u32_u24 v238, 48, v240\nv_lshl_add_u32 v238, v239, 3, v238\nv_add_u32 v238, s35, v238")
            k(f"s_mul_i32 s35, s6, 10240\ns_add_u32 s35, s35, {PHK}")
            k("v_mul_u32_u24 v240, 80, v240\nv_lshl_add_u32 v239, v239, 3, v240\nv_add_u32 v239, s35, v239")
            k("s_mul_i32 s35, s3, 2816\nv_mul_u32_u24 v240, 576, v4\nv_lshl_add_u32 v240, v3, 2, v240\nv_add_u32 v240, s35, v240")
            k("v_lshlrev_b32 v242, 2, v1\nv_add_u32 v241, s35, v242")
            k(f"s_mul_i32 s51, s21, 5632\ns_mul_i32 s35, s6, 2816\ns_add_u32 s51, s51, s35\ns_mul_i32 s35, s7, 2304\ns_add_u32 s51, s51, s35\ns_add_u32 s51, s51, {kvoff}")
            k("s_mov_b32 s49, s7")
    k.stamp("gemm_done")
    CSQ, CSK = 56, 84
    for mt in range(7):
        k(f"ds_read_b128 {V(CSQ+4*mt,4)}, v7 offset:{64*mt}\nds_read_b128 {V(CSK+4*mt,4)}, v7 offset:{64*mt+16}")
    k.barrier(lg=False)

    Q, K_ = ACC(0, 0), ACC(1, 0)
    EP, EN, TMP = 112, 130, 148
    P, VV = 216, 16 + 40
    VV = 100
    m, rs, sc = 252, 254, 158
    s_pre = []
    for e in range(28): s_pre.append(f"v_permlane16_swap_b32 v{K_+e if False else Q+e}, v{K_+e}")
    for nt in range(2):
        s_pre.append(f"v_cndmask_b32 v{m+nt}, 0, v{SQ(nt)}, s[52:53]")
        for r in range(1, 4): s_pre.append(f"v_cndmask_b32 v{m+nt}, v{m+nt}, v{SQ(nt)+r}, s[{52+2*r}:{53+2*r}]")
    s_pre += [f"v_permlane16_swap_b32 v{m}, v{m+1}", f"v_add_f32 v{rs}, v{m}, v{m+1}", f"v_mov_b32 v{rs+1}, v{rs}", f"v_permlane32_swap_b32 v{rs}, v{rs+1}",
              f"v_add_f32 v{rs}, v{rs}, v{rs+1}",
              f"v_mul_f32 v{m}, s32, v{Q+27}", f"v_mul_f32 v{m+1}, v{m}, v{m}", f"v_fma_f32 v{rs}, v{rs}, s32, -v{m+1}",
              f"v_max_f32 v{rs}, 0, v{rs}", f"v_add_f32 v{rs}, s33, v{rs}", f"v_rsq_f32 v{rs}, v{rs}"]
    for q in range(14):
        s_pre.append(f"v_pk_fma_f32 {V(K_+2*q,2)}, {V(CSK+2*q,2)}, {V(m,2)}, {V(K_+2*q,2)} op_sel_hi:[1,0,1] neg_lo:[0,1,0] neg_hi:[0,1,0]")
    for q in list(range(9, 14)) + list(range(9)):
        s_pre.append(f"v_pk_fma_f32 {V(Q+2*q,2)}, {V(CSQ+2*q,2)}, {V(m,2)}, {V(Q+2*q,2)} op_sel_hi:[1,0,1] neg_lo:[0,1,0] neg_hi:[0,1,0]")
    s_pre += [f"v_mul_f32 v{sc}, s34, v{rs}", f"v_mul_f32 v{sc+1}, s34, v{rs}"]
    s_k = []
    for q in range(5):
        s_k += [f"v_pk_mul_f32 {V(Q+18+2*q,2)}, {V(Q+18+2*q,2)}, {V(rs,2)} op_sel_hi:[1,0]", f"v_pk_mul_f32 {V(K_+18+2*q,2)}, {V(K_+18+2*q,2)}, {V(rs,2)} op_sel_hi:[1,0]"]
    vsrc = [Q + 18 + i for i in range(9)] + [K_ + 18 + i for i in range(9)]
    for q in range(9): s_k.append(f"v_cvt_pk_bf16_f32 v{VV+q}, v{vsrc[2*q]}, v{vsrc[2*q+1]}")
    s_k.append(f"v_mov_b32 v{VV+9}, 0x3f80")
    s_k += [f"ds_write_b128 v12, {V(VV,4)}", f"ds_write_b128 v12, {V(VV+4,4)} offset:16", f"ds_write_b64 v12, {V(VV+8,2)} offset:32"]
    s_k += softmax_stream(K_, P, EP, EN, sc, TMP)
    s_k += [f"ds_write_b128 v11, {V(P+4*q,4)} offset:{16*q}" for q in range(4)] + [f"ds_write_b64 v11, {V(P+16,2)} offset:64"]
    KA = 128
    s_kv = [lambda: k.barrier()]
    for ks in range(4):
        for h in range(2): s_kv.append(f"ds_read_b64_tr_b16 {A(KA+4*ks+2*h,2)}, v238 offset:{1536*ks + 192*h}")
        for ft in range(3):
            for h in range(2): s_kv.append(f"ds_read_b64_tr_b16 {A(KA+16+12*ks+4*ft+2*h,2)}, v239 offset:{2560*ks + 320*h + 32*ft}")
    KD = 84
    for ks in range(4):
        for ft in range(3):
            c = "0" if ks == 0 else V(KD+4*ft, 4)
            s_kv.append(f"v_mfma_f32_16x16x32_bf16 {V(KD+4*ft,4)}, {A(KA+4*ks,4)}, {A(KA+16+12*ks+4*ft,4)}, {c}")
    sm_q = softmax_stream(Q, P, EP, EN, sc, TMP)
    s_kv += sm_q[:12]
    for ft in range(2):
        for r in range(4): s_kv.append(f"ds_write_b32 v240, v{KD+4*ft+r} offset:{144*r + 64*ft}")
    s_kv.append(["s_mov_b32 exec_lo, 0x000f000f", "s_mov_b32 exec_hi, 0x000f000f"] + [f"ds_write_b32 v240, v{KD+8+r} offset:{144*r + 128}" for r in range(4)] + ["s_mov_b64 exec, -1"])
    for i in range(9): s_kv.append(f"ds_read_b32 v{72+i}, v241 offset:{256*i}")
    s_kv += sm_q[12:20]
    at = [f"buffer_atomic_add_f32 v72, v242, s[8:11], s51 offen"]
    at += ["s_cmp_eq_u32 s49, 0", "s_cselect_b32 exec_hi, -1, 0xfff", f"buffer_atomic_add_f32 v73, v242, s[8:11], s51 offen offset:256", "s_mov_b32 exec_hi, -1",
           "s_cselect_b32 s51, s51, 0x7ff00000"]
    s_kv.append(at)
    for i in range(2, 9): s_kv.append(f"buffer_atomic_add_f32 v{72+i}, v242, s[8:11], s51 offen offset:{256*i}")
    s_q = sm_q[20:]
    for q, off in enumerate((0, 1024, 512, 1536)):
        s_q.append(f"buffer_store_dwordx4 {V(P+4*q,4)}, v13, s[8:11], s50 offen offset:{off}{SC1}")
    s_q.append(f"buffer_store_dwordx2 {V(P+16,2)}, v14, s[8:11], s50 offen offset:2048{SC1}")

    def plain():
        merge(k, s_pre, []); k.stamp("pre"); merge(k, s_k, []); k.stamp("k_done"); merge(k, s_kv, []); k.stamp("atomics"); merge(k, s_q, []); k.stamp("q_done")
    def fin():
        if stamp is not None:
            k.wait(vm=0)
            k.stamp_dump(stamp, 16)
        k.i("s_endpgm")
    if conv:
        k("s_cmp_eq_u32 s48, 0")
        k.hazard_flush()
        st0 = k.save(); nst0 = getattr(k, "nst", 0)
        k.i(f"s_cbranch_scc1 {L}_NOCONV")
        cb, cm, ce = conv_streams(k)
        merge(k, s_pre, cb, 1, 2)
        k.stamp("pre")
        rest = s_k + [lambda: k.stamp("k_done")] + s_kv + [lambda: k.stamp("atomics")] + s_q + [lambda: k.stamp("q_done")]
        merge(k, rest, cm, 1, 1)
        k.stamp("conv_done")
        merge(k, ce, [])
        fin()
        k.label(f"{L}_NOCONV"); k.restore(st0); k.nst = nst0
        names = list(getattr(k, "stnames", []))
        plain()
        k.stamp("conv_done")
        k.stnames = names
        fin()
    else:
        plain()
        fin()
    k.label(f"{L}_END")
    k.i("s_endpgm")
    return k

def conv_streams(k):
    HD = lambda i: 16 + 6 * i
    b = []
    AW, AZ, AA, AB, AU, AY = 8, 9, 10, 15, 5, 6
    T0 = 112
    b += [f"s_mul_i32 s41, s3, {CONVW}", f"s_add_u32 s41, s41, {CONVB}", "s_add_u32 s43, s41, 16640"]
    b += [f"v_add_u32 v{AW}, s41, v2", f"v_lshlrev_b32 v{AZ}, 3, v1", f"v_add_u32 v{AZ}, s43, v{AZ}"]
    b += [f"v_add_u32 v{AA}, 1, v3", f"v_and_b32 v{AB}, 3, v{AA}", f"v_and_b32 v{AA}, 0x1c, v{AA}", f"v_lshl_add_u32 v{AA}, v4, 3, v{AA}", f"v_lshlrev_b32 v{AA}, 1, v{AA}",
          f"v_mul_u32_u24 v{AB}, 4160, v{AB}", f"v_add3_u32 v{AA}, v{AA}, v{AB}, s41"]
    b += [f"v_lshlrev_b32 v{AU}, 5, v3", f"v_lshlrev_b32 v{AB}, 4, v4", f"v_sub_u32 v{AB}, v{AB}, v{AU}", "s_add_u32 s47, s43, 480", f"v_add_u32 v{AB}, s47, v{AB}"]
    b += [f"v_lshl_add_u32 v{AY}, v4, 3, v{AU}", "s_add_u32 s47, s43, 504", f"v_sub_u32 v{AU}, s47, v{AY}"]
    Z = T0 + 12
    b += [f"v_mov_b32 v{Z+r}, 0" for r in range(4)]
    b += [f"ds_write_b64 v{AZ}, {V(Z,2)} offset:4096"]
    for i in range(4): b.append(f"ds_write_b128 v{AW}, {V(40+4*i,4)} offset:{16640 + 1024*i}")
    for i in range(4):
        d = HD(i)
        b.append(f"ds_write_b128 v{AW}, {V(d,4)} offset:{32 + 1024*i}")
        for q in range(4): b.append(f"v_alignbit_b32 v{T0+q}, v{d+q+1}, v{d+q}, 16")
        b.append(f"ds_write_b128 v{AW}, {V(T0,4)} offset:{32 + 4160 + 1024*i}")
        for q in range(4): b.append(f"v_mov_b32 v{T0+4+q}, v{d+q+1}")
        b.append(f"ds_write_b128 v{AW}, {V(T0+4,4)} offset:{32 + 2*4160 + 1024*i}")
        for q in range(4): b.append(f"v_alignbit_b32 v{T0+8+q}, v{d+q+2}, v{d+q+1}, 16")
        b.append(f"ds_write_b128 v{AW}, {V(T0+8,4)} offset:{32 + 3*4160 + 1024*i}")
        if i == 0:
            E = T0 + 16
            g = ["s_mov_b64 exec, 1"]
            g += [f"ds_write_b128 v{AW}, {V(Z,4)} offset:{4160*r}" for r in range(4)]
            g += [f"ds_write_b128 v{AW}, {V(Z,4)} offset:16"]
            g += [f"v_mov_b32 v{E}, 0", f"v_mov_b32 v{E+1}, 0", f"v_mov_b32 v{E+2}, 0", f"v_lshlrev_b32 v{E+3}, 16, v{d}", f"ds_write_b128 v{AW}, {V(E,4)} offset:{4160+16}"]
            g += [f"v_mov_b32 v{E+4}, 0", f"v_mov_b32 v{E+5}, 0", f"v_mov_b32 v{E+6}, 0", f"v_mov_b32 v{E+7}, v{d}", f"ds_write_b128 v{AW}, {V(E+4,4)} offset:{2*4160+16}"]
            g += [f"v_mov_b32 v{Z+2}, v{E+3}", f"v_mov_b32 v{Z+3}, v{T0}", f"ds_write_b128 v{AW}, {V(Z,4)} offset:{3*4160+16}", "s_mov_b64 exec, -1"]
            b.append(g)
    def reads(rho):
        bb = 64 * (rho & 1)
        out = []
        for j in range(8):
            s = rho + 8 * j
            out.append(f"ds_read_b64 {A(bb+4*j,2)}, v{AA} offset:{64*s}")
            out.append(f"ds_read_b64 {A(bb+4*j+2,2)}, v{AA} offset:{64*s+8}")
            out.append(f"ds_read_b128 {A(bb+32+4*j,4)}, v{AB} offset:{3584 - 64*(8*j - rho)}")
        return out
    b += reads(0)
    m = []
    CA = 16
    pairs = sorted([(sg, tau) for sg in range(8) for tau in range(8) if sg + tau <= 7], key=lambda p: (max(p), p))
    seen = set()
    for rho in range(8):
        bb = 64 * (rho & 1)
        fill = reads(rho + 1) if rho < 7 else []
        for n, (sg, tau) in enumerate(pairs):
            c8 = sg + tau
            acc = V(CA + 4 * c8, 4)
            c = acc if c8 in seen else "0"
            seen.add(c8)
            it = [f"v_mfma_f32_16x16x32_bf16 {acc}, {A(bb+4*sg,4)}, {A(bb+32+4*tau,4)}, {c}"]
            if fill and n >= 8: it.append(fill.pop(0))
            m.append(it)
        assert not fill
    e = []
    U = 56
    for c8 in range(8): e.append(f"ds_read_b64 {V(U+2*c8,2)}, v{AU} offset:{3584 - 512*c8}")
    m = m[:-20] + e + m[-20:]
    e = [f"s_add_u32 s44, s42, {OFF_YT}", "s_mov_b32 s47, 0xffff0000"]
    for c8 in range(8):
        a = CA + 4 * c8; u = U + 2 * c8; t = T0 + 4 * (c8 & 1)
        e += [f"v_and_b32 v{t}, s47, v{u+1}", f"v_lshlrev_b32 v{t+1}, 16, v{u+1}", f"v_and_b32 v{t+2}, s47, v{u}", f"v_lshlrev_b32 v{t+3}, 16, v{u}"]
        e += [f"v_fmac_f32 v{a+r}, s46, v{t+r}" for r in range(4)]
        e += [f"v_cvt_pk_bf16_f32 v{u}, v{a}, v{a+1}", f"v_cvt_pk_bf16_f32 v{u+1}, v{a+2}, v{a+3}"]
        e += [f"buffer_store_dwordx2 {V(u,2)}, v{AY}, s[8:11], s44 offen offset:{512*c8}{SC1}"]
    return b, m, e
```

```python
from asmgen import *
from layout import *
from k0 import srd

KVL, OIMG, YL, STAT = 0, 90112, 126976, 136192
K2_LDS = 137216
import os
SC1 = ' sc1' if os.environ.get('SC1', '1') == '1' else ''

def gen_out(name, xoff, kvoff, stoff, final, stamp=None):
    k = Kern(name)
    L = name.upper()
    k("s_cmp_ge_u32 s2, 256")
    k.i(f"s_cbranch_scc1 {L}_END")
    k.stamps_on = stamp is not None
    k.stamp_off = stamp
    k.stamp("start")
    k("s_load_dwordx2 s[16:17], s[0:1], 96\ns_load_dwordx2 s[18:19], s[0:1], 80")
    k("v_and_b32 v1, 63, v0\nv_lshrrev_b32 v5, 6, v0\nv_lshlrev_b32 v2, 4, v1")
    k("v_readfirstlane_b32 s3, v5")
    k("v_and_b32 v3, 15, v0\nv_bfe_u32 v4, v0, 4, 2\nv_and_b32 v6, 31, v0\nv_bfe_u32 v7, v0, 5, 1")
    k("s_lshr_b32 s20, s2, 5\ns_lshl_b32 s20, s20, 3\ns_and_b32 s4, s2, 7\ns_add_u32 s20, s20, s4\ns_bfe_u32 s21, s2, 0x20003")
    srd(k, 8, 16, WS_SIZE)
    srd(k, 12, 18, XBYTES)
    k(f"s_lshl_b32 s4, s20, 5\ns_lshl_b32 s5, s3, 3\ns_add_u32 s4, s4, s5\ns_mul_i32 s22, s4, 2304\ns_add_u32 s22, s22, {OFF_PQ}")
    k(f"s_mul_i32 s24, s3, 22528\ns_add_u32 s23, s24, {kvoff}")
    k("v_lshlrev_b32 v8, 3, v6\nv_lshl_add_u32 v8, v7, 2, v8")
    k("s_lshl_b32 s4, s3, 1\ns_add_u32 s4, s4, 1\ns_cmp_eq_u32 s3, 0\ns_cselect_b32 s26, 0, s4\ns_mul_i32 s25, s21, 9\ns_add_u32 s25, s25, s26")
    k(f"s_mul_i32 s27, s25, 18432\ns_add_u32 s27, s27, {OFF_WO}")
    k.hazard_flush()
    st0 = k.save()
    k("s_cmp_eq_u32 s3, 0")
    k.i(f"s_cbranch_scc0 {L}_B")
    body(k, L + "A", 3, xoff, stoff, final)
    k.label(f"{L}_B"); k.restore(st0); k.nst = 1
    body(k, L + "B", 2, xoff, stoff, final)
    k.label(f"{L}_END")
    k.i("s_endpgm")
    return k

def body(k, L, NT, xoff, stoff, final):
    PB = lambda i: 16 + 10 * i
    WA = lambda t, s: (t * 18 + s) * 4
    kvl = []
    def kv_dma(j):
        def f():
            if j % 4 == 0:
                if j: k("s_add_u32 s23, s23, 4096\ns_add_u32 s24, s24, 4096")
                k("s_mov_b32 m0, s24")
            k(f"buffer_load_dwordx4 v2, s[8:11], s23 offen offset:{1024*(j%4)} lds", tag=f"kv{j}")
        return f
    def pq_load(i):
        def f():
            if i: k("s_add_u32 s22, s22, 2304")
            k(f"buffer_load_dwordx4 {V(PB(i),4)}, v2, s[8:11], s22 offen")
            k(f"buffer_load_dwordx4 {V(PB(i)+4,4)}, v2, s[8:11], s22 offen offset:1024")
            k(f"buffer_load_dword v{PB(i)+8}, v8, s[8:11], s22 offen offset:2048")
        return f
    j = 0
    for i in range(8):
        need = (2816 * (i + 1) + 1023) // 1024
        while j < need: kv_dma(j)(); j += 1
        pq_load(i)()
    wo = []
    for s in range(18):
        for t in range(NT):
            def f(s=s, t=t):
                if s % 4 == 0 and t == 0:
                    for tt in range(NT): k(f"s_add_u32 s{28+tt}, s27, {tt*18432 + s*1024}")
                k(f"buffer_load_dwordx4 {A(WA(t,s),4)}, v2, s[8:11], s{28+t} offen offset:{1024*(s%4)}")
            wo.append(f)
    XR = lambda t: 96 + 4 * t
    def xy_loads():
        k("v_and_b32 v9, 1, v4\nv_mul_u32_u24 v9, 18432, v9\nv_lshrrev_b32 v10, 1, v4\nv_lshl_add_u32 v9, v10, 8, v9\nv_lshl_add_u32 v9, v3, 4, v9")
        k(f"s_mul_i32 s31, s20, 36864\ns_lshl_b32 s4, s25, 9\ns_add_u32 s31, s31, s4")
        k(f"s_add_u32 s32, s31, {xoff}")
        for t in range(NT): k(f"buffer_load_dwordx4 {V(XR(t),4)}, v9, s[8:11], s32 offen offset:{512*t}")
        k("v_lshrrev_b32 v10, 2, v1\nv_lshlrev_b32 v10, 12, v10\nv_and_b32 v11, 3, v1\nv_lshl_add_u32 v10, v11, 4, v10")
        k(f"s_lshl_b32 s33, s25, 16\ns_lshl_b32 s4, s20, 6\ns_add_u32 s33, s33, s4\ns_add_u32 s33, s33, {OFF_YT}")
        k(f"s_lshl_b32 s34, s26, 10\ns_add_u32 s34, s34, {YL}")
        for t in range(NT):
            if t: k("s_add_u32 s33, s33, 65536\ns_add_u32 s34, s34, 1024")
            k("s_mov_b32 m0, s34")
            k("buffer_load_dwordx4 v10, s[8:11], s33 offen lds", tag="y")
    for _ in range(3 * NT): wo.pop(0)()
    k("v_lshrrev_b32 v11, 3, v6\nv_and_b32 v12, 3, v6\nv_lshl_add_u32 v11, v11, 2, v12\nv_bfe_u32 v12, v6, 2, 1\nv_mul_u32_u24 v12, 9, v12\nv_add_u32 v12, v12, v11")
    k("v_cmp_gt_u32 vcc, 9, v11\nv_cndmask_b32 v12, 18, v12, vcc\nv_mul_u32_u24 v12, 144, v12\ns_mul_i32 s4, s3, 22528\nv_add_u32 v12, s4, v12")
    k("v_lshl_add_u32 v13, v7, 3, v12\nv_lshl_add_u32 v12, v7, 6, v12")
    k(f"v_and_b32 v14, 1, v4\nv_mul_u32_u24 v14, 18432, v14\nv_mul_u32_u24 v15, 2304, v7\nv_add_u32 v14, v14, v15\nv_lshl_add_u32 v14, v3, 4, v14\ns_mul_i32 s4, s3, 4608\ns_add_u32 s4, s4, {OIMG}\nv_add_u32 v14, s4, v14")
    for i in range(8): k(f"v_mov_b32 v{PB(i)+9}, 0")
    KR = lambda b: 108 + 18 * b
    KF = lambda b: 144 + 10 * b
    OA = lambda b: 164 + 16 * b
    OV = 196
    OP = 216
    k(f"v_mov_b32 v{KF(0)+9}, 0\nv_mov_b32 v{KF(1)+9}, 0\ns_mov_b32 s35, 0x358637bd")
    def kv_reads(i):
        need = (2816 * (i + 1) + 1023) // 1024
        k.wait_tag(f"kv{need-1}")
        b = i & 1
        for q in range(4): k(f"ds_read_b128 {V(KR(b)+4*q,4)}, v12 offset:{2816*i + 16*q}")
        k(f"ds_read_b64 {V(KR(b)+16,2)}, v13 offset:{2816*i + 128}")
    def o_mfma(i):
        b = i & 1
        for q in range(9): k(f"v_cvt_pk_bf16_f32 v{KF(b)+q}, v{KR(b)+2*q}, v{KR(b)+2*q+1}")
        k(f"v_mfma_f32_32x32x16_bf16 {V(OA(b),16)}, {V(KF(b),4)}, {V(PB(i),4)}, 0")
        k(f"v_mfma_f32_32x32x16_bf16 {V(OA(b),16)}, {V(KF(b)+4,4)}, {V(PB(i)+4,4)}, {V(OA(b),16)}")
        k(f"v_mfma_f32_32x32x8_bf16 {V(OA(b),16)}, {V(KF(b)+8,2)}, {V(PB(i)+8,2)}, {V(OA(b),16)}")
    written = 0
    def o_fin(i):
        nonlocal written
        b = i & 1
        k(f"v_add_f32 v{OA(b)+9}, s35, v{OA(b)+9}\nv_rcp_f32 v{OA(b)+9}, v{OA(b)+9}")
        for q in range(9): k(f"v_mul_f32 v{OV+9*b+q}, v{OA(b)+q}, v{OA(b)+9}")
        if b == 1:
            p = i // 2
            for q in range(9): k(f"v_cvt_pk_bf16_f32 v{OP+9*p+q}, v{OV+2*q}, v{OV+2*q+1}")
            while (written + 1) * 4 <= 9 * (p + 1):
                k(f"ds_write_b128 v14, {V(OP+4*written,4)} offset:{256*written}"); written += 1
    nsp = (len(wo) + 7) // 8
    k.stamp("issued1")
    kv_reads(0)
    k.stamp("kv0")
    for i in range(8):
        if i + 1 < 8: kv_reads(i + 1)
        o_mfma(i)
        for _ in range(nsp):
            if wo: wo.pop(0)()
        if i > 0: o_fin(i - 1)
    xy_loads()
    o_fin(7)
    k.stamp("o_done")
    k.barrier()
    k.stamp("bar1")
    OB = lambda b, nt: 108 + 8 * b + 4 * nt
    AC = lambda t, nt: 124 + 8 * t + 4 * nt
    k(f"v_add_u32 v11, {OIMG}, v2")
    def b_reads(s): return [f"ds_read_b128 {V(OB(s&1,nt),4)}, v11 offset:{18432*nt + 1024*s}" for nt in range(2)]
    for t in b_reads(0): k(t)
    for s in range(18):
        fill = b_reads(s + 1) if s < 17 else []
        for t in range(NT):
            for nt in range(2):
                c = "0" if s == 0 else V(AC(t, nt), 4)
                k(f"v_mfma_f32_16x16x32_bf16 {V(AC(t,nt),4)}, {A(WA(t,s),4)}, {V(OB(s&1,nt),4)}, {c}")
                if fill: k(fill.pop(0))
    k.stamp("proj_done")
    k("v_lshrrev_b32 v12, 1, v4\nv_lshlrev_b32 v12, 3, v12\nv_lshrrev_b32 v13, 2, v3\nv_add_u32 v12, v12, v13\nv_lshlrev_b32 v12, 6, v12")
    k(f"v_and_b32 v13, 1, v4\nv_lshl_add_u32 v12, v13, 5, v12\nv_and_b32 v13, 3, v3\nv_lshl_add_u32 v12, v13, 3, v12\ns_lshl_b32 s4, s26, 10\ns_add_u32 s4, s4, {YL}\nv_add_u32 v12, s4, v12")
    k.wait_tag("y")
    YR = lambda t: 148 + 4 * t
    for t in range(NT):
        for q in range(2): k(f"ds_read_b64_tr_b16 {V(YR(t)+2*q,2)}, v12 offset:{1024*t + 256*q}")
    k("s_mov_b32 s36, 0xffff0000")
    XU = 160
    for t in range(NT):
        for r in range(4): k(f"v_permlane16_swap_b32 v{AC(t,0)+r}, v{AC(t,1)+r}")
        for q in range(4): k(f"v_lshlrev_b32 v{XU+2*q}, 16, v{XR(t)+q}\nv_and_b32 v{XU+2*q+1}, s36, v{XR(t)+q}")
        for q in range(4): k(f"v_pk_add_f32 {V(AC(t,0)+2*q,2)}, {V(AC(t,0)+2*q,2)}, {V(XU+2*q,2)}")
    S1, S2 = 168, 170
    first = True
    for t in range(NT):
        for q in range(4):
            x = V(AC(t, 0) + 2 * q, 2)
            if first:
                k(f"v_pk_mul_f32 {V(S2,2)}, {x}, {x}\nv_pk_add_f32 {V(S1,2)}, {x}, {V(AC(t,0)+2,2)}")
                first = False
            else:
                k(f"v_pk_fma_f32 {V(S2,2)}, {x}, {x}, {V(S2,2)}")
                if not (t == 0 and q == 1): k(f"v_pk_add_f32 {V(S1,2)}, {V(S1,2)}, {x}")
    k(f"v_add_f32 v{S1}, v{S1}, v{S1+1}\nv_add_f32 v{S1+1}, v{S2}, v{S2+1}")
    k(f"v_mov_b32 v{S2}, v{S1}\nv_mov_b32 v{S2+1}, v{S1+1}")
    k(f"v_permlane32_swap_b32 v{S1}, v{S2}\nv_permlane32_swap_b32 v{S1+1}, v{S2+1}")
    k(f"v_pk_add_f32 {V(S1,2)}, {V(S1,2)}, {V(S2,2)}")
    k(f"v_lshlrev_b32 v13, 3, v6\nv_add_u32 v14, {STAT}, v13\ns_lshl_b32 s4, s3, 8\nv_add_u32 v15, s4, v14")
    k(f"ds_write_b64 v15, {V(S1,2)}")
    YU = 176
    for t in range(NT):
        for q in range(4): k(f"v_lshlrev_b32 v{YU+8*t+2*q}, 16, v{YR(t)+q}\nv_and_b32 v{YU+8*t+2*q+1}, s36, v{YR(t)+q}")
    k(f"s_lshl_b32 s37, s20, 10\ns_add_u32 s37, s37, {stoff}")
    k("s_lshl_b32 s38, s21, 8")
    k("v_add_u32 v160, s21, v7\nv_add_u32 v161, 1, v160\nv_and_b32 v161, 3, v161\nv_lshl_add_u32 v161, v161, 8, v13")
    k("v_add_u32 v162, 3, v160\nv_and_b32 v162, 3, v162\nv_lshl_add_u32 v162, v162, 8, v13")
    k.stamp("stats")
    k.barrier()
    k.stamp("bar2")
    if NT == 2:
        for w in range(4): k(f"ds_read_b64 {V(200+2*w,2)}, v14 offset:{256*w}")
        k(f"v_pk_add_f32 v[200:201], v[200:201], v[202:203]\nv_pk_add_f32 v[204:205], v[204:205], v[206:207]\nv_pk_add_f32 v[200:201], v[200:201], v[204:205]")
        k("v_min_u32 v201, -2, v201")
        k("s_add_u32 s39, s37, s38\ns_cmp_eq_u32 s3, 3\ns_cselect_b32 s39, s39, 0x7ff00000\ns_mov_b64 exec, 0xffffffff")
        k("buffer_store_dwordx2 v[200:201], v13, s[8:11], s39 offen sc1")
        k("s_mov_b64 exec, -1")
    k("s_mov_b32 s40, 0x100000")
    k.wait(vm=0, lg=0)
    k.hazard_flush()
    k.label(f"{L}_POLL")
    k("buffer_load_dwordx2 v[164:165], v161, s[8:11], s37 offen sc1\nbuffer_load_dwordx2 v[166:167], v162, s[8:11], s37 offen sc1")
    k("v_max_u32 v163, v165, v167")
    k("v_cmp_eq_u32 vcc, -1, v163")
    k("s_sub_u32 s40, s40, 1\ns_cselect_b64 s[44:45], 0, vcc\ns_cmp_eq_u64 s[44:45], 0")
    k.i(f"s_cbranch_scc1 {L}_GO")
    k.i("s_sleep 2")
    k.i(f"s_branch {L}_POLL")
    k.label(f"{L}_GO")
    k.stamp("polled")
    k("v_pk_add_f32 v[164:165], v[164:165], v[166:167]")
    k("v_mov_b32 v166, v164\nv_mov_b32 v167, v165")
    k("v_permlane32_swap_b32 v164, v166\nv_permlane32_swap_b32 v165, v167")
    k("v_pk_add_f32 v[164:165], v[164:165], v[166:167]")
    k("s_mov_b32 s41, 0x3ae38e39\ns_mov_b32 s42, 0x3727c5ac")
    k("v_mul_f32 v164, s41, v164\nv_mul_f32 v166, v164, v164\nv_fma_f32 v165, v165, s41, -v166\nv_max_f32 v165, 0, v165\nv_add_f32 v165, s42, v165\nv_rsq_f32 v166, v165")
    k("v_mul_f32 v164, v164, v166\nv_mov_b32 v167, v166\nv_sub_f32 v164, 0, v164\nv_mov_b32 v165, v164")
    if final:
        k("v_and_b32 v9, 1, v4\nv_lshl_add_u32 v9, v9, 4, v3\nv_mul_u32_u24 v9, 1152, v9\nv_lshrrev_b32 v10, 1, v4\nv_lshl_add_u32 v9, v10, 4, v9")
        k("s_mul_i32 s32, s20, 36864\ns_lshl_b32 s4, s25, 5\ns_add_u32 s32, s32, s4")
    else:
        k(f"s_add_u32 s32, s31, {OFF_XF2}")
    for t in range(NT):
        for q in range(4):
            x = V(AC(t, 0) + 2 * q, 2); tt = V(200 + 2 * q, 2)
            k(f"v_pk_fma_f32 {tt}, {x}, v[166:167], v[164:165]")
            k(f"v_pk_fma_f32 {x}, {tt}, {V(YU+8*t+2*q,2)}, {x}")
        for q in range(4): k(f"v_cvt_pk_bf16_f32 v{XR(t)+q}, v{AC(t,0)+2*q}, v{AC(t,0)+2*q+1}")
        if final: k(f"buffer_store_dwordx4 {V(XR(t),4)}, v9, s[12:15], s32 offen offset:{32*t}")
        else: k(f"buffer_store_dwordx4 {V(XR(t),4)}, v9, s[8:11], s32 offen offset:{512*t}{SC1}")
    if k.stamps_on:
        k.stamp("stored")
        k.wait(vm=0)
        k.stamp_dump(k.stamp_off, 16)
    k.i("s_endpgm")
```

```python
import sys
from asmgen import *
from layout import *
import k0, k1, k2
HEADER = open("interleave_layers__linear_kernel_hedgehog__ssm_conv_h3__prompt.s.ref").read().split("; Override launch")[0]
def build(kernels, launches, path):
    out = [HEADER.rstrip("\n")]
    for (name, grid, block, lds) in launches:
        out.append(f"; @launch kernel={name} grid=({grid},1,1) block=({block},1,1) lds={lds}")
    out.append('.amdgcn_target "amdgcn-amd-amdhsa--gfx950"')
    out.append(".text")
    for k in kernels: out.append(k.text())
    out.append('.section .rodata,"a"')
    for k in kernels: out.append(k.desc())
    open(path, "w").write("\n".join(out))
    for k in kernels: print(k.name, "ins", k.nins, "v", k.maxv + 1, "a", k.maxa + 1, "s", k.maxs + 1)
DBG = 0x2000000
def full(st=False):
    sp = (lambda i: DBG + i * 0x10000) if st else (lambda i: None)
    ks = [k0.gen_k0(sp(0)), k1.gen_qkv("k1_kernel", OFF_XF0, OFF_KV, True, sp(1)), k2.gen_out("k2_kernel", OFF_XF0, OFF_KV, OFF_ST, False, sp(2)),
          k1.gen_qkv("k3_kernel", OFF_XF2, OFF_KV + KV_STRIDE, False, sp(3)), k2.gen_out("k4_kernel", OFF_XF2, OFF_KV + KV_STRIDE, OFF_ST + ST_STRIDE, True, sp(4))]
    ls = [("k0_kernel", k0.K0_GRID, 256, k0.K0_LDS), ("k1_kernel", 256, 256, k1.K1_LDS), ("k2_kernel", 256, 256, k2.K2_LDS),
          ("k3_kernel", 256, 256, k1.K1_LDS), ("k4_kernel", 256, 256, k2.K2_LDS)]
    return ks, ls
if __name__ == "__main__":
    ks, ls = full()
    build(ks, ls, sys.argv[1] if len(sys.argv) > 1 else "t2.s")
    ks, ls = full(True)
    build(ks, ls, "t2s.s")
    import json
    json.dump({k.name: getattr(k, "stnames", []) for k in ks}, open("t2s.json", "w"))
```

```python
from build import *
import re
ks, ls = full()
for idx, k in enumerate(ks):
    new = []
    started = False
    for line in k.out:
        t = line.strip()
        if not started and t.startswith("s_cbranch_scc1") and t.endswith("_END"):
            new.append(line)
            new.append("    s_memrealtime s[92:93]\n    s_memtime s[94:95]\n    s_load_dwordx2 s[96:97], s[0:1], 88\n    s_waitcnt lgkmcnt(0)")
            started = True
            continue
        if t == "s_endpgm" and new[-1].strip().endswith("_END:"):
            new.append(line); continue
        if t == "s_endpgm":
            new.append(f"""    s_waitcnt vmcnt(0) lgkmcnt(0)
    s_memrealtime s[98:99]
    s_memtime s[100:101]
    s_sub_u32 s96, s96, {512*idx}
    s_subb_u32 s97, s97, 0
    s_waitcnt lgkmcnt(0)
    s_not_b32 s92, s92
    s_sub_u32 s100, s100, s94
    s_mov_b64 exec, 1
    v_mov_b32 v1, 0
    v_mov_b32 v2, s92
    v_mov_b32 v3, s98
    v_mov_b32 v4, s100
    global_atomic_umax v1, v2, s[96:97] offset:{12*idx}
    global_atomic_umax v1, v3, s[96:97] offset:{12*idx+4}
    global_atomic_umax v1, v4, s[96:97] offset:{12*idx+8}""")
        new.append(line)
    k.out = new
    k.maxs = 101
build(ks, ls, "v_hstamp.s")
```

```python
from build import *
ks, ls = full()
for idx, k in enumerate(ks):
    new = []
    started = False
    cnt = 0
    for line in k.out:
        t = line.strip()
        if not started and t.startswith("s_cbranch_scc1") and t.endswith("_END"):
            new.append(line)
            new.append("    s_memrealtime s[92:93]\n    s_memtime s[94:95]\n    s_load_dwordx2 s[96:97], s[0:1], 88\n    s_load_dwordx2 s[90:91], s[0:1], 96\n    v_readfirstlane_b32 s89, v0\n    s_waitcnt lgkmcnt(0)")
            started = True
            continue
        if t == "s_endpgm" and new[-1].strip().endswith("_END:"):
            new.append(line); continue
        if t == "s_endpgm":
            cnt += 1
            extra = ""
            if idx == 4:
                extra = f"""
    s_waitcnt vmcnt(0)
    s_mov_b64 exec, 0xffff
    v_mbcnt_lo_u32_b32 v5, -1, 0
    v_lshlrev_b32 v5, 2, v5
    v_add_u32 v6, 0x2000000, v5
    global_load_dword v7, v6, s[90:91] sc1
    s_waitcnt vmcnt(0)
    global_store_dword v5, v7, s[96:97]
    s_sub_u32 s96, s96, 2048
    s_subb_u32 s97, s97, 0
    global_store_dword v5, v7, s[96:97]"""
            new.append(f"""    s_or_b32 s88, s2, s89
    s_cmp_lg_u32 s88, 0
    s_cbranch_scc1 HS_{idx}_{cnt}
    s_waitcnt vmcnt(0) lgkmcnt(0)
    s_memrealtime s[98:99]
    s_memtime s[100:101]
    s_waitcnt lgkmcnt(0)
    s_sub_u32 s100, s100, s94
    s_mov_b64 exec, 1
    v_mov_b32 v1, 0x2000000
    v_mov_b32 v2, s92
    v_mov_b32 v3, s98
    v_mov_b32 v4, s100
    global_store_dwordx3 v1, v[2:4], s[90:91] offset:{12*idx} sc1{extra}
HS_{idx}_{cnt}:""")
        new.append(line)
    k.out = new
    k.maxs = 101
build(ks, ls, "v_hstamp.s")
```

```python
import re, copy

TRANS = ("v_exp_f32", "v_log_f32", "v_rcp_f32", "v_rsq_f32", "v_sqrt_f32", "v_sin_f32", "v_cos_f32", "v_rcp_iflag_f32")
_MOD_RE = re.compile(r"\b(op_sel_hi|op_sel|neg_lo|neg_hi|quad_perm):\[[^\]]*\]")
_REG_RE = re.compile(r"^-?(?:abs\(|\|)?([vas])(?:(\d+)|\[(\d+):(\d+)\])\)?\|?$")

def regs_of(tok):
    tok = tok.strip()
    if tok in ("vcc", "exec", "m0", "scc"):
        return [("x", tok)]
    if tok in ("vcc_lo", "vcc_hi"): return [("x", "vcc")]
    if tok in ("exec_lo", "exec_hi"): return [("x", "exec")]
    m = _REG_RE.match(tok)
    if not m: return []
    k = m.group(1)
    if m.group(2) is not None:
        return [(k, int(m.group(2)))]
    return [(k, i) for i in range(int(m.group(3)), int(m.group(4)) + 1)]

def V(a, n=1):
    return f"v{a}" if n == 1 else f"v[{a}:{a+n-1}]"
def A(a, n=1):
    return f"a{a}" if n == 1 else f"a[{a}:{a+n-1}]"
def Sg(a, n=1):
    return f"s{a}" if n == 1 else f"s[{a}:{a+n-1}]"

class Inst:
    __slots__ = ("text", "op", "ops", "rest", "kind", "reads", "writes", "passes", "srcc", "srcab", "isdpp", "lds_dma", "wide_store_data", "sgpr_reads_vmem")

def parse(text):
    t = text.split(";")[0].strip()
    sp = t.split(None, 1)
    op = sp[0]
    rest = sp[1] if len(sp) > 1 else ""
    mods = " ".join(m.group(0) for m in _MOD_RE.finditer(rest))
    rest2 = _MOD_RE.sub("", rest)
    parts = [p.strip() for p in rest2.split(",")] if rest2.strip() else []
    ops = []
    tail = ""
    for p in parts:
        w = p.split()
        ops.append(w[0] if w else "")
        tail += " " + " ".join(w[1:])
    tail += " " + mods
    I = Inst(); I.text = text; I.op = op; I.ops = ops; I.rest = tail
    I.reads = []; I.writes = []; I.passes = 0; I.srcc = []; I.srcab = []; I.isdpp = False; I.lds_dma = False; I.wide_store_data = []
    R = lambda i: regs_of(ops[i]) if i < len(ops) else []
    base = op.replace("_e32", "").replace("_e64", "").replace("_dpp", "").replace("_sdwa", "")
    if op.startswith("v_mfma"):
        I.kind = "mfma"
        I.passes = 8 if "32x32" in op else 4
        I.writes = R(0); I.srcab = R(1) + R(2); I.srcc = R(3); I.reads = I.srcab + I.srcc
    elif op.startswith("v_"):
        I.kind = "valu"
        I.isdpp = ("row_" in tail) or ("quad_perm" in tail) or ("wave_" in tail) or op.endswith("_dpp")
        if base.startswith("v_cmp"):
            I.writes = R(0); I.reads = R(1) + R(2)
            if base.startswith("v_cmpx"): I.writes = I.writes + [("x", "exec")]
        elif base in ("v_permlane16_swap_b32", "v_permlane32_swap_b32", "v_swap_b32"):
            I.writes = R(0) + R(1); I.reads = R(0) + R(1)
        elif base in ("v_add_co_u32", "v_sub_co_u32", "v_subrev_co_u32"):
            I.writes = R(0) + R(1); I.reads = R(2) + R(3)
        elif base in ("v_addc_co_u32", "v_subb_co_u32"):
            I.writes = R(0) + R(1); I.reads = R(2) + R(3) + R(4)
        else:
            I.writes = R(0)
            I.reads = sum((R(i) for i in range(1, len(ops))), [])
            if base in ("v_fmac_f32", "v_dot2c_f32_bf16", "v_pk_fmac_f16", "v_fmac_f16", "v_mac_f32", "v_writelane_b32") or I.isdpp or "dst_unused:UNUSED_PRESERVE" in tail:
                I.reads = I.reads + R(0)
            if base == "v_cndmask_b32" and len(ops) == 3:
                I.reads = I.reads + [("x", "vcc")]
    elif op.startswith("ds_"):
        I.kind = "ds"
        if op.startswith("ds_read") or op.startswith("ds_bpermute") or op.startswith("ds_permute") or op.startswith("ds_swizzle") or "_rtn" in op:
            I.writes = R(0); I.reads = sum((R(i) for i in range(1, len(ops))), [])
        else:
            I.reads = sum((R(i) for i in range(len(ops))), [])
    elif op.startswith("buffer_") or op.startswith("global_"):
        I.kind = "vmem"
        islds = bool(re.search(r"\blds\b", tail)) or "load_lds" in op
        if op in ("buffer_wbl2", "buffer_inv"):
            pass
        elif islds:
            I.lds_dma = True
            I.reads = sum((R(i) for i in range(len(ops))), []) + [("x", "m0")]
        elif "_load" in op:
            I.writes = R(0); I.reads = sum((R(i) for i in range(1, len(ops))), [])
            if "d16" in op: I.reads = I.reads
        elif "atomic" in op and re.search(r"\bsc0\b", tail):
            if op.startswith("buffer_"):
                I.writes = R(0); I.reads = sum((R(i) for i in range(len(ops))), [])
            else:
                I.writes = R(0); I.reads = sum((R(i) for i in range(1, len(ops))), [])
        else:
            I.reads = sum((R(i) for i in range(len(ops))), [])
            if "x3" in op or "x4" in op:
                I.wide_store_data = R(0) if op.startswith("buffer_") else R(1)
    elif op.startswith("s_load") or op.startswith("s_buffer_load") or op in ("s_memtime", "s_memrealtime"):
        I.kind = "smem"
        I.writes = R(0); I.reads = sum((R(i) for i in range(1, len(ops))), [])
    elif op.startswith("s_"):
        I.kind = "salu"
        if op in ("s_waitcnt", "s_barrier", "s_nop", "s_endpgm", "s_branch", "s_sleep", "s_setprio") or op.startswith("s_cbranch"):
            I.kind = "ctl"
        elif op.startswith("s_cmp") or op.startswith("s_bitcmp"):
            I.reads = R(0) + R(1); I.writes = [("x", "scc")]
        else:
            I.writes = R(0); I.reads = sum((R(i) for i in range(1, len(ops))), [])
            if "saveexec" in op:
                I.writes = I.writes + [("x", "exec")]; I.reads = I.reads + [("x", "exec")]
            if op in ("s_addk_i32", "s_mulk_i32"): I.reads = I.reads + R(0)
    else:
        raise ValueError("unknown instr: " + text)
    return I

class Kern:
    def __init__(self, name):
        self.name = name
        self.out = []
        self.pos = 0
        self.w = {}
        self.crd = {}
        self.std = {}
        self.vm = []
        self.lg = []
        self.nins = 0
        self.maxv = -1; self.maxa = -1; self.maxs = -1
    def raw(self, s): self.out.append(s)
    def c(self, s): self.out.append("    ; " + s)
    def label(self, l): self.out.append(l + ":")
    def _emit(self, text, ws=1):
        self.out.append("    " + text); self.pos += ws; self.nins += 1
    def nop(self, n):
        while n > 0:
            k = min(n, 16); self._emit(f"s_nop {k-1}", k); n -= k
    def wait(self, vm=None, lg=None):
        parts = []
        if vm is not None:
            vm = max(0, vm)
            if vm < len(self.vm):
                if vm <= 62: parts.append(f"vmcnt({vm})")
                self.vm = self.vm[len(self.vm) - vm:] if vm else []
        if lg is not None:
            lg = max(0, lg)
            if lg < len(self.lg):
                if any(s for _, s in self.lg): lg = 0
                if lg <= 14: parts.append(f"lgkmcnt({lg})")
                self.lg = self.lg[len(self.lg) - lg:] if lg else []
        if parts: self._emit("s_waitcnt " + " ".join(parts))
    def wait_force(self, vm=None, lg=None):
        parts = []
        if vm is not None:
            parts.append(f"vmcnt({vm})"); self.vm = self.vm[len(self.vm) - vm:] if 0 < vm < len(self.vm) else ([] if vm == 0 else self.vm)
        if lg is not None:
            parts.append(f"lgkmcnt({lg})"); self.lg = self.lg[len(self.lg) - lg:] if 0 < lg < len(self.lg) else ([] if lg == 0 else self.lg)
        self._emit("s_waitcnt " + " ".join(parts))
    def wait_tag(self, tag):
        idx = [i for i, (_, t) in enumerate(self.vm) if t == tag]
        if idx: self.wait(vm=len(self.vm) - 1 - idx[-1])
    def barrier(self, lg=True):
        if lg: self.wait(lg=0)
        self._emit("s_barrier")
    def i(self, text, tag=None):
        I = parse(text)
        touched = set(I.reads) | set(I.writes)
        for (k, n) in touched:
            if k == "v": self.maxv = max(self.maxv, n)
            elif k == "a": self.maxa = max(self.maxa, n)
            elif k == "s": self.maxs = max(self.maxs, n)
        needvm = None; needlg = None
        d16 = I.kind == "vmem" and "d16" in I.op
        for idx, (dest, _) in enumerate(self.vm):
            chk = set(I.reads) if d16 else touched
            if dest & chk: needvm = len(self.vm) - 1 - idx
        for idx, (dest, _) in enumerate(self.lg):
            if dest & touched: needlg = len(self.lg) - 1 - idx
        if needvm is not None or needlg is not None:
            self.wait(vm=needvm, lg=needlg)
        need = self.pos
        def req(p, ws):
            nonlocal need
            need = max(need, p + 1 + ws)
        isvalu = I.kind == "valu"
        base = I.op.replace("_e32", "").replace("_e64", "")
        for r in I.reads:
            wr = self.w.get(r)
            if not wr: continue
            k, p, info = wr
            if k == "mfma":
                if I.kind == "mfma":
                    if r in I.srcab: req(p, 8 if info[0] == 4 else 12)
                    if r in I.srcc:
                        if tuple(I.srcc) == info[1] and I.passes == info[0]: pass
                        else: req(p, info[0] + 2)
                elif I.kind in ("valu", "vmem", "ds"): req(p, 8 if info[0] == 4 else 12)
            elif k == "valu":
                if r[0] in ("v", "a"):
                    if I.kind == "mfma": req(p, 2)
                    if isvalu:
                        if base in ("v_readfirstlane_b32", "v_readlane_b32"): req(p, 1)
                        if I.isdpp: req(p, 2)
                        if base.startswith("v_permlane"): req(p, 2)
                        if info == "trans" and base not in TRANS: req(p, 1)
                        if info == "opsel": req(p, 1)
                    if info == "dot":
                        pass
                else:
                    if isvalu: req(p, 4 if base in ("v_readlane_b32", "v_writelane_b32") else 2)
                    if I.kind == "vmem": req(p, 5)
                    if I.kind == "mfma": req(p, 4)
            elif k == "dot":
                same = (I.op == info) and (r in regs_of(I.ops[-1]) or r in I.writes) and r not in (regs_of(I.ops[1]) + regs_of(I.ops[2]))
                if not same and I.kind in ("valu", "mfma", "vmem", "ds"): req(p, 3)
            elif k == "salu":
                if r == ("x", "m0") and (I.lds_dma or "addtid" in I.op): req(p, 1)
        for r in I.writes:
            wr = self.w.get(r)
            if wr:
                k, p, info = wr
                if k == "mfma":
                    if I.kind == "mfma":
                        if not (tuple(I.writes) == info[1] and I.passes == info[0]): req(p, info[0] + 2)
                    else: req(p, 8 if info[0] == 4 else 12)
                if k == "dot" and I.op != info: req(p, 3)
            if isvalu or I.kind in ("vmem", "ds"):
                cr = self.crd.get(r)
                if cr: req(cr[1], 3 if cr[0] == 4 else 7)
            st = self.std.get(r)
            if st is not None: req(st, 2 if isvalu or I.kind == "mfma" else 1)
        if I.kind == "mfma":
            ex = self.w.get(("x", "exec"))
            if ex and ex[0] == "valu": req(ex[1], 4)
        if need > self.pos: self.nop(need - self.pos)
        p = self.pos
        if I.op == "s_nop": self._emit(text, int(I.ops[0], 0) + 1)
        else: self._emit(text)
        for r in I.writes:
            if I.kind == "mfma": self.w[r] = ("mfma", p, (I.passes, tuple(I.writes)))
            elif isvalu:
                if base.startswith("v_dot"): self.w[r] = ("dot", p, I.op)
                else:
                    info = "trans" if base in TRANS else ("opsel" if ("dst_sel" in I.rest or "op_sel:" in I.rest and not base.startswith("v_pk")) else None)
                    self.w[r] = ("valu", p, info)
            elif I.kind == "salu": self.w[r] = ("salu", p, None)
            else: self.w.pop(r, None)
        if I.kind == "mfma":
            for r in I.srcc: self.crd[r] = (I.passes, p)
        for r in I.wide_store_data: self.std[r] = p
        if I.kind == "vmem": self.vm.append((frozenset(I.writes), tag))
        elif I.kind == "ds": self.lg.append((frozenset(I.writes), False))
        elif I.kind == "smem": self.lg.append((frozenset(I.writes), True))
        elif I.op == "s_waitcnt": raise ValueError("use wait()")
    def __call__(self, text, tag=None):
        for t in text.strip().split("\n"):
            t = t.strip()
            if t: self.i(t, tag)
    stamps_on = False
    SB = 72
    def stamp(self, name=""):
        if not self.stamps_on: return
        n = getattr(self, "nst", 0)
        assert n < 14, "too many stamps"
        self.i(f"s_memtime s[{self.SB+2*n}:{self.SB+1+2*n}]")
        self.lg[-1] = (frozenset(), True)
        self.nst = n + 1
        names = getattr(self, "stnames", [])
        self.stnames = names[:n] + [name]
    def stamp_dump(self, off, wsptr):
        if not self.stamps_on: return
        n = self.nst; B = self.SB
        self("s_mov_b64 exec, -1")
        self.i(f"s_memtime s[{B+2*n}:{B+1+2*n}]"); n += 1
        self.i("s_memrealtime s[70:71]")
        self.wait_force(lg=0)
        for i in range(n):
            self(f"s_sub_u32 s{B+1+2*i}, s{B+2*i}, s{B}\nv_mov_b32 v{16+i}, s{B+1+2*i}")
        self(f"v_mov_b32 v16, s{B}")
        for i in range(n, 16): self(f"v_mov_b32 v{16+i}, 0")
        self("v_mov_b32 v31, s70")
        self(f"s_lshl_b32 s70, s2, 2\ns_add_u32 s70, s70, s3\ns_lshl_b32 s70, s70, 6\ns_add_u32 s70, s70, {off}\nv_mov_b32 v15, s70\ns_mov_b64 exec, 1")
        for q in range(4): self(f"global_store_dwordx4 v15, v[{16+4*q}:{19+4*q}], s[{wsptr}:{wsptr+1}] offset:{16*q}")
    def hazard_flush(self):
        need = self.pos
        for r, (k, p, info) in self.w.items():
            ws = {"mfma": 12, "valu": 5, "dot": 3, "salu": 1}.get(k, 0)
            if k == "mfma": ws = 8 if info[0] == 4 else 12
            need = max(need, p + 1 + ws)
        for r, (ps, p) in self.crd.items(): need = max(need, p + 1 + (3 if ps == 4 else 7))
        for r, p in self.std.items(): need = max(need, p + 3)
        if need > self.pos: self.nop(need - self.pos)
    def save(self):
        return copy.deepcopy((self.pos, self.w, self.crd, self.std, self.vm, self.lg))
    def restore(self, st):
        self.pos, self.w, self.crd, self.std, self.vm, self.lg = copy.deepcopy(st)
    def restore_mem(self, st):
        self.vm, self.lg = copy.deepcopy(st[4]), copy.deepcopy(st[5])
    def text(self):
        return "\n".join([f".globl {self.name}", ".p2align 8", f".type {self.name},@function", f"{self.name}:"] + self.out) + "\n"
    def desc(self, force_acc=None):
        nv = self.maxv + 1
        acc = max(4, (nv + 3) // 4 * 4)
        if force_acc: acc = force_acc
        tot = acc + self.maxa + 1 if self.maxa >= 0 else nv
        return "\n".join([".p2align 6", f".amdhsa_kernel {self.name}", f"  .amdhsa_next_free_vgpr {tot}", f"  .amdhsa_next_free_sgpr {max(self.maxs + 1, 16)}",
            f"  .amdhsa_accum_offset {acc}", "  .amdhsa_group_segment_fixed_size 0", "  .amdhsa_kernarg_size 104", "  .amdhsa_user_sgpr_count 2",
            "  .amdhsa_user_sgpr_kernarg_segment_ptr 1", "  .amdhsa_system_sgpr_workgroup_id_x 1",
            "  .amdhsa_float_denorm_mode_32 3", "  .amdhsa_float_denorm_mode_16_64 3", ".end_amdhsa_kernel"]) + "\n"
```

```python
from asmgen import *
from layout import *

NB, NA, NC, ND, NE = 96, 144, 54, 96, 67
import os
SC1 = ' sc1' if os.environ.get('SC1', '1') == '1' else ''
K0_GRID = NB + NA + NC + ND + NE
K0_LDS = 59904

def srd(k, dst, lo, size):
    k(f"s_mov_b32 s{dst}, s{lo}\ns_mov_b32 s{dst+1}, s{lo+1}\ns_mov_b32 s{dst+2}, {size}\ns_mov_b32 s{dst+3}, 0x20000")

def gen_k0(stamp=None):
    k = Kern("k0_kernel")
    k.stamps_on = stamp is not None
    k(f"s_cmp_ge_u32 s2, {K0_GRID}")
    k.i("s_cbranch_scc1 K0_END")
    k.stamp("start")
    def fin():
        if stamp is not None:
            k.stamp("issued_st")
            k.wait(vm=0)
            k.stamp_dump(stamp, 32)
            k.nst = 1
        k.i("s_endpgm")
    k("s_load_dwordx8 s[16:23], s[0:1], 0\ns_load_dwordx8 s[24:31], s[0:1], 32\ns_load_dwordx2 s[32:33], s[0:1], 96")
    k("v_and_b32 v1, 63, v0\nv_lshrrev_b32 v2, 6, v0")
    k("v_readfirstlane_b32 s3, v2")
    k("v_and_b32 v3, 15, v0\nv_bfe_u32 v4, v0, 4, 2")
    k.hazard_flush()
    st = k.save()
    k(f"s_cmp_ge_u32 s2, {NB+NA+NC+ND}"); k.i("s_cbranch_scc1 K0_E")
    k(f"s_cmp_ge_u32 s2, {NB+NA+NC}"); k.i("s_cbranch_scc1 K0_D")
    k(f"s_cmp_ge_u32 s2, {NB+NA}"); k.i("s_cbranch_scc1 K0_C")
    k(f"s_cmp_ge_u32 s2, {NB}"); k.i("s_cbranch_scc1 K0_A")

    k.c("role B")
    SR = lambda: (srd(k, 40, 18, 576 * 1728 * 2), srd(k, 44, 20, 32 * 324 * 2), srd(k, 8, 32, WS_SIZE))
    RAW, T = 0, 23056
    k("s_mov_b32 s4, 0x2aaaaaab\ns_mul_hi_u32 s5, s2, s4")
    k("s_mul_i32 s6, s5, 6\ns_sub_u32 s6, s2, s6")
    k("v_mul_u32_u24 v5, 4370, v1\nv_lshrrev_b32 v5, 16, v5")
    k("v_mul_u32_u24 v6, 15, v5\nv_sub_u32 v6, v1, v6")
    k("v_mul_u32_u24 v7, 13108, v6\nv_lshrrev_b32 v7, 16, v7")
    k("v_mul_u32_u24 v8, 5, v7\nv_sub_u32 v8, v6, v8")
    k("v_mul_u32_u24 v5, 3456, v5\nv_mul_u32_u24 v7, 1152, v7\nv_lshlrev_b32 v8, 4, v8\nv_add3_u32 v5, v5, v7, v8")
    k("s_mul_i32 s7, s6, 96\ns_mul_i32 s12, s3, 24\ns_add_u32 s7, s7, s12\ns_mul_i32 s7, s7, 3456\ns_mul_i32 s12, s5, 72\ns_add_u32 s7, s7, s12")
    k("s_mul_i32 s12, s3, 5760")
    SR()
    k("s_mov_b32 exec_hi, 0x0fffffff")
    for i in range(6):
        k("s_mov_b32 m0, s12")
        k("buffer_load_dwordx4 v5, s[40:43], s7 offen lds", tag="raw")
        if i < 5: k("s_add_u32 s7, s7, 13824\ns_add_u32 s12, s12, 960")
    k("s_mov_b32 exec_hi, -1")
    k("s_mul_i32 s13, s5, 1296\nv_lshlrev_b32 v9, 1, v0")
    for i in range(3):
        k(f"buffer_load_ushort v{10+i}, v9, s[44:47], s13 offen offset:{512*i}")
    k("v_mov_b32 v16, 0\nv_mov_b32 v17, 0\nv_mov_b32 v18, 0\nv_mov_b32 v19, 0\nv_lshlrev_b32 v14, 4, v0")
    for i in range(9):
        k(f"ds_write_b128 v14, v[16:19] offset:{23040 + 4096*i}")
    for i in range(3):
        e, hh, rem, d, f, ad = 20, 21, 22, 23, 24, 26 + i
        k(f"v_add_u32 v{e}, {256*i}, v0")
        k(f"v_cmp_le_u32 vcc, 324, v{e}")
        k(f"v_cndmask_b32 v{hh}, 0, 1, vcc")
        k(f"v_mul_u32_u24 v{rem}, 324, v{hh}\nv_sub_u32 v{rem}, v{e}, v{rem}")
        k(f"v_mul_u32_u24 v{d}, 3641, v{rem}\nv_lshrrev_b32 v{d}, 16, v{d}")
        k(f"v_mul_u32_u24 v{f}, 18, v{d}\nv_sub_u32 v{f}, v{rem}, v{f}")
        k(f"v_lshrrev_b32 v25, 2, v{f}\nv_lshlrev_b32 v25, 4, v25\nv_and_b32 v{f}, 3, v{f}\nv_add_u32 v25, v25, v{f}\nv_lshl_add_u32 v25, v{hh}, 3, v25")
        k(f"v_mul_u32_u24 v25, 272, v25")
        k(f"v_mul_u32_u24 v{hh}, 18, v{hh}\nv_add_u32 v{hh}, v{hh}, v{d}\nv_lshl_add_u32 v{ad}, v{hh}, 1, v25")
    k("v_cmp_le_u32 vcc, 18, v0\nv_cndmask_b32 v21, 0, 1, vcc\nv_mul_u32_u24 v22, 18, v21\nv_sub_u32 v22, v0, v22")
    k("v_cmp_le_u32 vcc, 9, v22\nv_cndmask_b32 v23, 0, 1, vcc\nv_mul_u32_u24 v24, 9, v23\nv_sub_u32 v24, v22, v24\nv_add_u32 v24, 18, v24")
    k("v_lshl_add_u32 v23, v21, 1, v23")
    k("v_lshrrev_b32 v25, 2, v24\nv_lshlrev_b32 v25, 4, v25\nv_and_b32 v24, 3, v24\nv_add_u32 v25, v25, v24\nv_lshl_add_u32 v25, v23, 2, v25")
    k("v_mul_u32_u24 v25, 272, v25\nv_lshl_add_u32 v29, v0, 1, v25\nv_mov_b32 v30, 0x3f80")
    k.barrier()
    for i in range(3):
        if i == 2:
            k("v_cmp_gt_u32 vcc, 136, v0\ns_and_saveexec_b64 s[14:15], vcc")
        k(f"ds_write_b16 v{26+i}, v{10+i} offset:{T}\nds_write_b16 v{26+i}, v{10+i} offset:{T + 4*272 + 80}")
    k("s_mov_b64 exec, s[14:15]")
    k("v_cmp_gt_u32 vcc, 36, v0\ns_and_saveexec_b64 s[14:15], vcc")
    k(f"ds_write_b16 v29, v30 offset:{T + 160}")
    k("s_mov_b64 exec, s[14:15]")
    k.wait(vm=0)
    k.stamp("loaded")
    k.barrier()
    k("s_lshl_b32 s12, s3, 5\nv_add_u32 v14, s12, v3\nv_mul_u32_u24 v14, 272, v14\nv_lshl_add_u32 v14, v4, 4, v14")
    for tt in range(2):
        for t in range(4):
            k(f"ds_read_b128 v[{32+16*tt+4*t}:{35+16*tt+4*t}], v14 offset:{T + tt*4352 + t*64}")
    k("v_lshrrev_b32 v15, 2, v3\nv_lshlrev_b32 v15, 3, v15\nv_and_b32 v20, 3, v3\nv_add_u32 v15, v15, v20\nv_mul_u32_u24 v15, 240, v15\nv_lshl_add_u32 v15, v4, 4, v15")
    for r in range(64, 68): k(f"v_mov_b32 v{r}, 0x3f803f80")
    for r in range(68, 76): k(f"v_mov_b32 v{r}, 0")
    k("v_cmp_eq_u32 vcc, 3, v20\ns_cmp_eq_u32 s3, 3\ns_cselect_b64 s[34:35], vcc, 0")
    k(f"s_mul_i32 s7, s5, {WQ_HP}\ns_mul_i32 s12, s6, 21504\ns_add_u32 s7, s7, s12\ns_lshl_b32 s12, s3, 11\ns_add_u32 s7, s7, s12")
    k("s_add_u32 s13, s7, 1024\ns_cmp_eq_u32 s3, 3\ns_cselect_b32 s13, 0x7ff00000, s13")
    k("v_lshlrev_b32 v21, 4, v1")
    for ks in range(3):
        for hf in range(2):
            ab = 80 + 16 * hf
            for t in range(4):
                k(f"ds_read_b128 v[{ab+4*t}:{ab+4*t+3}], v15 offset:{(32*ks+4*hf)*240 + 64*t}")
        for hf in range(2):
            ab = 80 + 16 * hf
            for tt in range(2):
                acc = 112 + 8 * tt + 4 * hf
                for t in range(4):
                    c = "0" if t == 0 else V(acc, 4)
                    k(f"v_mfma_f32_16x16x32_bf16 {V(acc,4)}, {V(ab+4*t,4)}, {V(32+16*tt+4*t,4)}, {c}")
        for tt in range(2):
            acc = 112 + 8 * tt; o = 128 + 4 * tt
            for q in range(4):
                k(f"v_cvt_pk_bf16_f32 v{o+q}, v{acc+2*q}, v{acc+2*q+1}")
            if tt == 0:
                for q in range(4): k(f"v_cndmask_b32 v{o+q}, v{o+q}, v64, s[34:35]")
            k(f"v_mfma_f32_16x16x32_bf16 {V(68+4*tt,4)}, {V(64,4)}, {V(o,4)}, {V(68+4*tt,4)}")
            k(f"buffer_store_dwordx4 {V(o,4)}, v21, s[8:11], s{7 if tt == 0 else 13} offen{SC1}")
        if ks < 2: k("s_add_u32 s7, s7, 7168\ns_add_u32 s13, s13, 7168")
    k(f"s_mul_i32 s7, s2, 448\ns_lshl_b32 s12, s3, 7\ns_add_u32 s7, s7, s12\ns_add_u32 s7, s7, {OFF_CS}")
    k("s_add_u32 s13, s7, 64\ns_cmp_eq_u32 s3, 3\ns_cselect_b32 s13, 0x7ff00000, s13")
    k("v_lshlrev_b32 v21, 2, v1\ns_mov_b64 exec, 0xffff")
    k("buffer_store_dword v68, v21, s[8:11], s7 offen\nbuffer_store_dword v72, v21, s[8:11], s13 offen")
    fin()

    k.label("K0_A"); k.restore(st)
    k(f"s_sub_u32 s4, s2, {NB}\ns_mov_b32 s5, 0x1c71c71d\ns_mul_hi_u32 s5, s4, s5")
    k("s_mul_i32 s6, s5, 9\ns_sub_u32 s6, s4, s6")
    k("v_and_b32 v5, 7, v1\nv_lshrrev_b32 v6, 3, v0")
    k("s_lshl_b32 s7, s5, 7\nv_lshlrev_b32 v7, 2, v6\nv_add_u32 v7, s7, v7\nv_mul_u32_u24 v7, 1152, v7")
    k("s_lshl_b32 s12, s6, 7\nv_lshlrev_b32 v8, 4, v5\nv_add3_u32 v7, v7, v8, s12")
    k("v_subrev_u32 v9, 3456, v7")
    srd(k, 52, 26, XBYTES); srd(k, 56, 28, XBYTES); srd(k, 60, 30, 576 * 4 * 2); srd(k, 8, 32, WS_SIZE)
    KR = 16
    for j in range(3): k(f"buffer_load_dwordx4 {V(KR+4*j,4)}, v9, s[52:55], 0 offen offset:{1152*j}")
    for j in range(4): k(f"buffer_load_dwordx4 {V(KR+12+4*j,4)}, v7, s[52:55], 0 offen offset:{1152*j}")
    k("s_lshl_b32 s12, s6, 9\nv_lshlrev_b32 v10, 6, v5")
    for j in range(4): k(f"buffer_load_dwordx4 {V(60+4*j,4)}, v10, s[60:63], s12 offen offset:{16*j}")
    for j in range(4): k(f"buffer_load_dwordx4 {V(44+4*j,4)}, v7, s[56:59], 0 offen offset:{1152*j}")
    k("v_sub_u32 v11, 31, v6\nv_lshrrev_b32 v12, 1, v11\nv_xor_b32 v12, v12, v5\nv_lshlrev_b32 v12, 4, v12\nv_and_b32 v11, 1, v11\nv_lshl_add_u32 v12, v11, 3, v12")
    k("v_lshl_add_u32 v12, v5, 11, v12")
    k("s_mov_b32 s13, 0xffff0000")
    for c in range(8):
        k(f"v_lshlrev_b32 v{80+c}, 16, v{60+2*c}\nv_and_b32 v{88+c}, s13, v{60+2*c}\nv_lshlrev_b32 v{96+c}, 16, v{61+2*c}\nv_and_b32 v{104+c}, s13, v{61+2*c}")
    k.wait(vm=0)
    k.stamp("loaded")
    for r in range(7):
        for q in range(4):
            k(f"v_lshlrev_b32 v{112+8*r+2*q}, 16, v{KR+4*r+q}\nv_and_b32 v{113+8*r+2*q}, s13, v{KR+4*r+q}")
    for t in range(4):
        for q in range(4):
            o = V(168+8*t+2*q, 2)
            k(f"v_pk_mul_f32 {o}, {V(112+8*(t)+2*q,2)}, {V(104+2*q,2)}")
            for lag in (2, 1, 0):
                k(f"v_pk_fma_f32 {o}, {V(112+8*(3+t-lag)+2*q,2)}, {V(80+8*lag+2*q,2)}, {o}")
    for t in range(4):
        for q in range(4):
            k(f"v_lshlrev_b32 v{112+8*t+2*q}, 16, v{44+4*t+q}\nv_and_b32 v{113+8*t+2*q}, s13, v{44+4*t+q}")
    for t in range(4):
        for q in range(4):
            o = V(168+8*t+2*q, 2)
            k(f"v_pk_mul_f32 {o}, {o}, {V(112+8*t+2*q,2)}")
    for c in range(8):
        k(f"v_cvt_pk_bf16_f32 v{16+2*c}, v{168+24+c}, v{168+16+c}\nv_cvt_pk_bf16_f32 v{17+2*c}, v{168+8+c}, v{168+c}")
        k(f"ds_write_b64 v12, {V(16+2*c,2)} offset:{256*c}")
    k.barrier()
    k("s_lshl_b32 s12, s3, 1\nv_xor_b32 v13, s12, v3\ns_add_u32 s12, s12, 1\nv_xor_b32 v14, s12, v3")
    k("s_lshl_b32 s12, s3, 12\nv_lshlrev_b32 v15, 8, v4\nv_add_u32 v15, s12, v15")
    k("v_lshl_add_u32 v13, v13, 4, v15\nv_lshl_add_u32 v14, v14, 4, v15")
    for i in range(4):
        k(f"ds_read_b128 {V(32+4*i,4)}, v{13 if i < 2 else 14} offset:{1024*i}")
    k("v_lshlrev_b32 v15, 12, v4\nv_lshl_add_u32 v15, v3, 4, v15")
    k(f"s_lshl_b32 s12, s6, 18\ns_lshl_b32 s13, s3, 16\ns_add_u32 s12, s12, s13\ns_lshl_b32 s13, s5, 8\ns_sub_u32 s12, s12, s13\ns_add_u32 s12, s12, {OFF_UT + 3840}")
    for i in range(4):
        k(f"buffer_store_dwordx4 {V(32+4*i,4)}, v15, s[8:11], s12 offen{SC1}")
        if i < 3: k("s_add_u32 s12, s12, 16384")
    fin()

    k.label("K0_C"); k.restore(st)
    k(f"s_sub_u32 s4, s2, {NB+NA}\ns_mov_b32 s5, 0x55555556\ns_mul_hi_u32 s5, s4, s5")
    k("s_mul_i32 s6, s5, 3\ns_sub_u32 s6, s4, s6")
    k("s_lshl_b32 s7, s5, 2\nv_add_u32 v5, s7, v4")
    k("v_lshrrev_b32 v6, 1, v5\nv_mul_u32_u24 v6, 18, v6\nv_and_b32 v7, 1, v5\nv_lshl_add_u32 v6, v7, 3, v6")
    k("v_subrev_u32 v7, 64, v5\nv_mul_u32_u24 v7, 72, v7\nv_cmp_gt_u32 vcc, 64, v5")
    for j in range(8):
        k(f"v_add_u32 v9, {j}, v6\nv_add_u32 v10, {18*(j>>1) + 16 + (j&1)}, v7\nv_cndmask_b32 v9, v10, v9, vcc")
        k(f"v_mul_u32_u24 v9, 1152, v9\nv_lshl_add_u32 v{16+j}, v3, 1, v9")
    srd(k, 48, 22, 576 * 576 * 2); srd(k, 8, 32, WS_SIZE)
    k("s_mul_i32 s7, s6, 12\ns_mul_i32 s12, s3, 3\ns_add_u32 s7, s7, s12")
    k("s_lshl_b32 s12, s7, 5")
    for i in range(3):
        for j in range(8):
            k(f"buffer_load_ushort v{48+8*i+j}, v{16+j}, s[48:51], s12 offen offset:{32*i}")
    k(f"s_mul_i32 s7, s7, 18\ns_add_u32 s7, s7, s5\ns_lshl_b32 s7, s7, 10\ns_add_u32 s7, s7, {OFF_WO}\nv_lshlrev_b32 v5, 4, v1")
    k.wait(vm=0)
    k.stamp("loaded")
    for i in range(3):
        for q in range(4): k(f"v_lshl_or_b32 v{32+4*i+q}, v{48+8*i+2*q+1}, 16, v{48+8*i+2*q}")
        k(f"buffer_store_dwordx4 {V(32+4*i,4)}, v5, s[8:11], s7 offen{SC1}")
        if i < 2: k("s_add_u32 s7, s7, 18432")
    fin()

    k.label("K0_D"); k.restore(st)
    k(f"s_sub_u32 s4, s2, {NB+NA+NC}\ns_lshl_b32 s4, s4, 2\ns_add_u32 s4, s4, s3\ns_mov_b32 s5, 0x55555556\ns_mul_hi_u32 s5, s4, s5")
    k("s_mul_i32 s6, s5, 3\ns_sub_u32 s6, s4, s6\ns_mul_i32 s6, s6, 6")
    k("v_lshrrev_b32 v5, 2, v1\nv_and_b32 v6, 3, v1\nv_mul_u32_u24 v7, 1152, v5\nv_lshl_add_u32 v7, v6, 4, v7")
    k("s_mul_i32 s7, s5, 18432\ns_lshl_b32 s12, s6, 6\ns_add_u32 s7, s7, s12")
    srd(k, 36, 16, XBYTES); srd(k, 8, 32, WS_SIZE)
    for i in range(6): k(f"buffer_load_dwordx4 {V(16+4*i,4)}, v7, s[36:39], s7 offen offset:{64*i}")
    k("s_mul_i32 s12, s3, 6528\nv_mul_u32_u24 v8, 272, v6\nv_lshl_add_u32 v8, v5, 4, v8\nv_add_u32 v8, s12, v8")
    k("v_mul_u32_u24 v9, 272, v4\nv_lshl_add_u32 v9, v3, 4, v9\nv_add_u32 v9, s12, v9")
    k.wait(vm=0)
    k.stamp("loaded")
    for i in range(6): k(f"ds_write_b128 v8, {V(16+4*i,4)} offset:{1088*i}")
    for i in range(6): k(f"ds_read_b128 {V(40+4*i,4)}, v9 offset:{1088*i}")
    k(f"s_mul_i32 s7, s5, 18\ns_add_u32 s7, s7, s6\ns_lshl_b32 s7, s7, 10\ns_add_u32 s7, s7, {OFF_XF0}\ns_add_u32 s12, s7, 4096\nv_lshlrev_b32 v5, 4, v1")
    for i in range(6):
        k(f"buffer_store_dwordx4 {V(40+4*i,4)}, v5, s[8:11], s{7 if i < 4 else 12} offen offset:{1024*(i%4)}{SC1}")
    fin()

    k.label("K0_E"); k.restore(st)
    k(f"s_sub_u32 s4, s2, {NB+NA+NC+ND}\ns_lshl_b32 s4, s4, 2\ns_add_u32 s4, s4, s3")
    k.stamp("loaded")
    for r in range(20, 24): k(f"v_mov_b32 v{r}, -1")
    k(f"v_lshlrev_b32 v5, 4, v1\ns_mul_i32 s7, s4, 7168\ns_add_u32 s7, s7, {OFF_SEN}\ns_add_u32 s12, s7, 4096")
    srd(k, 8, 32, WS_SIZE)
    for i in range(7): k(f"buffer_store_dwordx4 v[20:23], v5, s[8:11], s{7 if i < 4 else 12} offen offset:{1024*(i%4)}{SC1}")
    fin()
    k.label("K0_END")
    k.i("s_endpgm")
    return k
```

```python
from asmgen import *
from layout import *
from k0 import srd
import os

RING = 21504
CONVB, CONVW = 86016, 21248
CSL, ZERO, STAT = 149760, 150784, 152320
KL_LDS = 153344
PHK, VIMG, OIMG, KVS, KVW, YL = 0, 20480, 0, 36864, 47104, 60416
LOG2E = 0x3fb8aa3b
XF = lambda nt, s: 16 + (2 * s + nt) * 4
ACC = lambda nt, mt: 160 + (nt * 7 + mt) * 4
SQ = lambda nt: 244 + 4 * nt
SC1 = " sc1"
def WA(t, s):
    if t < 2: return 56 + (t * 18 + s) * 4
    return 200 + 4 * s if s < 6 else 4 * (s - 6)
def wo_loads(k, tiles):
    out = []
    for s in range(18):
        for t in tiles:
            def f(s=s, t=t):
                if s % 4 == 0: k(f"s_add_u32 s{65+t}, s64, {t*18432 + s*1024}")
                k(f"buffer_load_dwordx4 {A(WA(t,s),4)}, v2, s[8:11], s{65+t} offen offset:{1024*(s%4)}")
            out.append(f)
    return out

def emit(k, it):
    if callable(it): it()
    elif isinstance(it, str): k(it)
    else:
        for t in it: (t() if callable(t) else k(t))
def merge(k, a, b, ra=1, rb=1, drain_b=True):
    a = list(a)
    while a or (b and drain_b):
        for _ in range(ra):
            if a: emit(k, a.pop(0))
        for _ in range(rb):
            if b: emit(k, b.pop(0))

def softmax_stream(T, P, EP, EN, sc, tmp):
    mx, mn, bp, bn, sp, sn = tmp, tmp + 1, tmp + 2, tmp + 4, tmp + 6, tmp + 8
    o = []
    o += [f"v_max3_f32 v{mx}, v{T}, v{T+1}, v{T+2}", f"v_min3_f32 v{mn}, v{T}, v{T+1}, v{T+2}"]
    for q in range(7):
        o += [f"v_max3_f32 v{mx}, v{mx}, v{T+3+2*q}, v{T+4+2*q}", f"v_min3_f32 v{mn}, v{mn}, v{T+3+2*q}, v{T+4+2*q}"]
    o += [f"v_max_f32 v{mx}, v{mx}, v{T+17}", f"v_min_f32 v{mn}, v{mn}, v{T+17}"]
    o += [f"v_mul_f32 v{bp}, v{mx}, v{sc}", f"v_mul_f32 v{bn}, v{mn}, v{sc}"]
    for q in range(9):
        o += [f"v_pk_fma_f32 {V(EP+2*q,2)}, {V(T+2*q,2)}, {V(sc,2)}, {V(bp,2)} op_sel_hi:[1,1,0] neg_lo:[0,0,1] neg_hi:[0,0,1]"]
        o += [f"v_pk_fma_f32 {V(EN+2*q,2)}, {V(T+2*q,2)}, {V(sc,2)}, {V(bn,2)} op_sel_hi:[1,1,0] neg_lo:[1,0,0] neg_hi:[1,0,0]"]
    for q in range(18):
        o += [f"v_exp_f32 v{EP+q}, v{EP+q}", f"v_exp_f32 v{EN+q}, v{EN+q}"]
        if q == 4: o += [f"v_pk_add_f32 {V(sp,2)}, {V(EP,2)}, {V(EP+2,2)}", f"v_pk_add_f32 {V(sn,2)}, {V(EN,2)}, {V(EN+2,2)}"]
        if q > 4 and q % 2 == 0:
            j = q // 2 - 1
            o += [f"v_pk_add_f32 {V(sp,2)}, {V(sp,2)}, {V(EP+2*j,2)}", f"v_pk_add_f32 {V(sn,2)}, {V(sn,2)}, {V(EN+2*j,2)}"]
    o += [f"v_pk_add_f32 {V(sp,2)}, {V(sp,2)}, {V(EP+16,2)}", f"v_pk_add_f32 {V(sn,2)}, {V(sn,2)}, {V(EN+16,2)}"]
    o += [f"v_add_f32 v{sp}, v{sp}, v{sp+1}", f"v_add_f32 v{sn}, v{sn}, v{sn+1}", f"v_rcp_f32 v{sp}, v{sp}", f"v_rcp_f32 v{sn}, v{sn}"]
    for q in range(9):
        o += [f"v_pk_mul_f32 {V(EP+2*q,2)}, {V(EP+2*q,2)}, {V(sp,2)} op_sel_hi:[1,0]", f"v_pk_mul_f32 {V(EN+2*q,2)}, {V(EN+2*q,2)}, {V(sn,2)} op_sel_hi:[1,0]"]
    for q in range(9):
        o += [f"v_cvt_pk_bf16_f32 v{P+q}, v{EP+2*q}, v{EP+2*q+1}", f"v_cvt_pk_bf16_f32 v{P+9+q}, v{EN+2*q}, v{EN+2*q+1}"]
    return o

SLP = lambda n, d: int(os.environ.get(n, d))
def poll(k, lab, loads, regs, tmp, pre=None, post=None, sleep=2, first=0):
    if first: k.i(f"s_sleep {first}")
    k.hazard_flush()
    k.label(lab)
    if pre: k(pre)
    for l in loads: emit(k, l)
    if len(regs) == 1:
        k(f"v_cmp_eq_u32 vcc, -1, v{regs[0]}")
    else:
        rs = list(regs)
        k(f"v_max_u32 v{tmp}, v{rs[0]}, v{rs[1]}"); rs = rs[2:]
        while len(rs) >= 2:
            k(f"v_max3_u32 v{tmp}, v{tmp}, v{rs[0]}, v{rs[1]}"); rs = rs[2:]
        if rs: k(f"v_max_u32 v{tmp}, v{tmp}, v{rs[0]}")
        k(f"v_cmp_eq_u32 vcc, -1, v{tmp}")
    if post: k(post)
    k("s_sub_u32 s68, s68, 1\ns_cselect_b64 s[36:37], 0, vcc\ns_cselect_b32 s68, 0, s68\ns_cmp_eq_u64 s[36:37], 0")
    k.i(f"s_cbranch_scc1 {lab}_GO")
    if sleep: k.i(f"s_sleep {sleep}")
    k.i(f"s_branch {lab}")
    k.label(f"{lab}_GO")

def gen_layer(name, layer, stamp=None):
    conv = layer == 0
    xoff = OFF_XF0 if layer == 0 else OFF_XF2
    k = Kern(name)
    L = name.upper()
    k.stamps_on = stamp is not None
    k.stamp_off = stamp
    k("s_cmp_ge_u32 s2, 256")
    k.i(f"s_cbranch_scc1 {L}_END")
    k.stamp("start")
    k("s_load_dwordx2 s[16:17], s[0:1], 96")
    if conv: k("s_load_dwordx4 s[24:27], s[0:1], 64")
    else: k("s_load_dwordx2 s[18:19], s[0:1], 80")
    k("v_and_b32 v1, 63, v0\nv_lshrrev_b32 v5, 6, v0\nv_lshlrev_b32 v2, 4, v1")
    k("v_readfirstlane_b32 s3, v5")
    k("v_and_b32 v3, 15, v0\nv_bfe_u32 v4, v0, 4, 2")
    k("s_and_b32 s4, s2, 7\ns_lshr_b32 s5, s2, 3")
    k("s_lshr_b32 s20, s4, 1\ns_lshl_b32 s20, s20, 2\ns_lshr_b32 s6, s5, 3\ns_add_u32 s20, s20, s6")
    k("s_and_b32 s21, s4, 1\ns_lshl_b32 s21, s21, 3\ns_and_b32 s6, s5, 7\ns_add_u32 s21, s21, s6")
    k(f"s_lshl_b32 s6, s20, 3\ns_lshl_b32 s7, s3, 1\ns_add_u32 s6, s6, s7\ns_mul_i32 s50, s6, 18432\ns_add_u32 s22, s50, {xoff}\ns_add_u32 s23, s22, 18432")
    k(f"s_mul_i32 s29, s3, 5376\ns_mul_i32 s28, s21, {WQ_HP}\ns_add_u32 s28, s28, s29")
    k(f"s_mul_i32 s6, s21, 2688\ns_add_u32 s6, s6, {OFF_CS}\nv_lshlrev_b32 v5, 2, v0\nv_add_u32 v6, {2*RING}, v2\ns_mov_b32 s68, 0x40000")
    if conv:
        k(f"s_mul_i32 s40, s2, 3\ns_add_u32 s40, s40, s3\ns_cmp_lt_u32 s3, 3\ns_cselect_b32 s48, 1, 0\ns_cmp_lt_u32 s2, 192\ns_cselect_b32 s48, s48, 0")
        k(f"s_lshl_b32 s42, s40, 12\ns_add_u32 s44, s42, {OFF_UT}\ns_lshr_b32 s45, s40, 1\ns_lshl_b32 s45, s45, 2")
    srd(k, 8, 16, WS_SIZE)
    if conv: srd(k, 12, 24, 576 * 4096)
    else: srd(k, 12, 18, XBYTES)

    def w_loads(st):
        def mk(i):
            def f():
                if i == 0: k(f"s_add_u32 s30, s29, {(st%4)*RING}\ns_add_u32 s31, s28, {st*RING + OFF_WQ}\ns_mov_b32 m0, s30")
                if i == 4: k("s_add_u32 s30, s30, 4096\ns_add_u32 s31, s31, 4096\ns_mov_b32 m0, s30")
                if i == 5: k("s_mov_b64 exec, 0xffff")
                k(f"buffer_load_dwordx4 v2, s[8:11], s31 offen offset:{1024*(i%4)} lds", tag=f"w{st}")
                if i == 5: k("s_mov_b64 exec, -1")
            return f
        return [mk(i) for i in range(6)]
    def x_loads(st):
        def mk(s, nt):
            def f():
                if s % 4 == 0 and s > 0: k(f"s_add_u32 s{22+nt}, s{22+nt}, 4096")
                k(f"buffer_load_dwordx4 {V(XF(nt,s),4)}, v2, s[8:11], s{22+nt} offen offset:{1024*(s%4)}")
            return f
        return [mk(s, nt) for s in range(3 * st, 3 * st + 3) for nt in range(2)]
    def stage_loads(st):
        a = w_loads(st); b = x_loads(st); out = []
        while a or b:
            if a: out.append(a.pop(0))
            if b: out.append(b.pop(0))
        return out
    def a_reads(s):
        fs = []
        for mt in range(7):
            o = ((s // 3) % 4) * RING + (s % 3) * 7168 + mt * 1024
            va, off = ("v2", o) if o < 2 * RING else ("v6", o - 2 * RING)
            fs.append(f"ds_read_b128 {A(28*(s&1)+4*mt,4)}, {va} offset:{off}")
        return fs
    def sync_stage(st):
        k.wait_tag(f"w{st}")
        k.barrier(lg=False)

    def setup_a():
        k("v_lshrrev_b32 v8, 1, v4\nv_and_b32 v9, 1, v4")
        k(f"v_lshlrev_b32 v7, 5, v8\nv_add_u32 v7, {CSL}, v7")
        k("s_lshl_b32 s6, s3, 5\nv_lshl_add_u32 v10, v9, 4, v3\nv_add_u32 v15, s6, v10")
        k(f"v_mul_u32_u24 v11, 10240, v8\nv_mul_u32_u24 v12, 80, v15\nv_add_u32 v11, v11, v12")
        k(f"v_mul_u32_u24 v12, 6144, v8\nv_mul_u32_u24 v13, 48, v15\nv_add_u32 v12, v12, v13\nv_add_u32 v12, {VIMG}, v12")
        k("v_mul_u32_u24 v13, 18432, v9\nv_lshl_add_u32 v13, v3, 4, v13\nv_lshl_add_u32 v14, v8, 2, v13\nv_lshl_add_u32 v13, v8, 9, v13")
        k(f"s_add_u32 s50, s50, {OFF_OB + layer*OB_STRIDE}\ns_lshr_b32 s6, s21, 1\ns_lshl_b32 s6, s6, 8\ns_and_b32 s7, s21, 1\ns_lshl_b32 s7, s7, 3\ns_add_u32 s6, s6, s7\ns_add_u32 s6, s6, 16384\ns_add_u32 s38, s50, s6")
        k("s_lshl_b32 s6, s21, 10\ns_add_u32 s50, s50, s6")
        k(f"s_mov_b32 s32, 0x3ae38e39\ns_mov_b32 s33, 0x3727c5ac\ns_mov_b32 s34, {LOG2E}")
        for r in range(4):
            lo = (1 << r) | (1 << (20 + r)); hi = (1 << (8 + r)) | (1 << (28 + r))
            k(f"s_mov_b32 s{52+2*r}, {lo:#x}\ns_mov_b32 s{53+2*r}, {hi:#x}")
    def setup_b():
        k("s_lshr_b32 s6, s3, 1\ns_and_b32 s49, s3, 1")
        k("v_lshrrev_b32 v238, 2, v3\nv_and_b32 v239, 3, v3\nv_lshl_add_u32 v240, v4, 3, v238")
        k(f"s_mul_i32 s31, s6, 6144\ns_lshl_b32 s35, s49, 5\ns_add_u32 s35, s31, s35\ns_add_u32 s35, s35, {VIMG}")
        k("v_mul_u32_u24 v238, 48, v240\nv_lshl_add_u32 v238, v239, 3, v238\nv_add_u32 v238, s35, v238")
        k(f"s_mul_i32 s35, s6, 10240")
        k("v_mul_u32_u24 v240, 80, v240\nv_lshl_add_u32 v239, v239, 3, v240\nv_add_u32 v239, s35, v239")
        k(f"s_mul_i32 s35, s3, 2560\ns_add_u32 s35, s35, {KVS}\nv_mul_u32_u24 v240, 640, v4\nv_lshl_add_u32 v240, v3, 2, v240\nv_add_u32 v240, s35, v240\nv_add_u32 v241, s35, v2")
        k(f"s_lshl_b32 s51, s21, 4\ns_add_u32 s51, s51, s20\ns_mul_i32 s51, s51, 6400\ns_mul_i32 s35, s6, 3200\ns_add_u32 s51, s51, s35\ns_mul_i32 s35, s49, 2560\ns_add_u32 s51, s51, s35\ns_add_u32 s51, s51, {OFF_PART}")
        k("s_lshl_b32 s60, s20, 2\ns_lshr_b32 s6, s21, 2\ns_add_u32 s60, s60, s6\ns_and_b32 s61, s21, 3")
        k("s_lshl_b32 s6, s3, 1\ns_add_u32 s6, s6, 1\ns_cmp_eq_u32 s3, 0\ns_cselect_b32 s62, 0, s6\ns_mul_i32 s63, s61, 9\ns_add_u32 s63, s63, s62")
        k(f"s_mul_i32 s64, s63, 18432\ns_add_u32 s64, s64, {OFF_WO}")
        k(f"s_mov_b32 s35, {KVW}\nv_lshrrev_b32 v242, 1, v4\nv_mul_u32_u24 v242, 1600, v242\nv_and_b32 v243, 3, v3\nv_mul_u32_u24 v243, 80, v243\nv_add3_u32 v242, v242, v243, s35")
        k(f"v_mov_b32 v243, {ZERO}\ns_mov_b32 s36, 0x00f0000f\ns_mov_b32 s37, 0xf0000f00\nv_cndmask_b32 v242, v243, v242, s[36:37]\nv_add_u32 v243, s35, v2")
    def gemm(cstream):
        later = {st: stage_loads(st + 2) for st in range(4)}
        late = wo_loads(k, [0, 1])
        def cs_pop(s):
            if cstream:
                emit(k, cstream.pop(0))
                cs_pop.n += 1
                if cs_pop.n % 2 == 0 and cstream: emit(k, cstream.pop(0))
        cs_pop.n = 0
        sync_stage(0)
        k.stamp("stage0")
        for t in a_reads(0): k(t)
        for s in range(18):
            fill = []
            if s + 1 < 18:
                if (s + 1) % 3 == 0: sync_stage((s + 1) // 3)
                fill += a_reads(s + 1)
            lds = later.get(s // 3, [])
            mine = [lds.pop(0) for _ in range(min(4, len(lds)))]
            if s >= 12: mine = [late.pop(0) for _ in range(6)]
            n = 0
            for nt in range(2):
                k(f"v_mfma_f32_16x16x32_bf16 {V(SQ(nt),4)}, {V(XF(nt,s),4)}, {V(XF(nt,s),4)}, " + ("0" if s == 0 else V(SQ(nt), 4)))
                cs_pop(s)
            for mt in range(7):
                for nt in range(2):
                    c = "0" if s == 0 else V(ACC(nt, mt), 4)
                    k(f"v_mfma_f32_16x16x32_bf16 {V(ACC(nt,mt),4)}, {A(28*(s&1)+4*mt,4)}, {V(XF(nt,s),4)}, {c}")
                    if fill and n % 2 == 0: k(fill.pop(0))
                    if mine and n % (3 if s < 12 else 2) == 1: mine.pop(0)()
                    cs_pop(s)
                    n += 1
            for f in mine: f()
            if s == 3:
                k("v_add_f32 v232, v232, v233\nv_add_f32 v234, v234, v235\nv_add_f32 v236, v236, v237\nv_add_f32 v232, v232, v234\nv_add_f32 v232, v232, v236")
                k(f"v_add_u32 v5, {CSL}, v5\nds_write_b32 v5, v232")
                k(f"v_mov_b32 v232, 0\nv_mov_b32 v233, 0\nv_lshlrev_b32 v234, 1, v5\nv_subrev_u32 v234, {2*CSL - ZERO}, v234\nv_min_u32 v234, {ZERO + 1528}, v234\nds_write_b64 v234, v[232:233]")
            if s == 7: setup_a()
            if s == 8: setup_b()
        assert not cstream
    def cs_loads():
        for p in range(6): k(f"buffer_load_dword v{232+p}, v5, s[8:11], s6 offen offset:{448*p}")

    if conv:
        k("s_cmp_eq_u32 s48, 0")
        k.hazard_flush()
        st0 = k.save(); nst0 = getattr(k, "nst", 0)
        k.i(f"s_cbranch_scc1 {L}_NOCONV")
        k("s_load_dword s46, s[26:27], s45")
        HD = lambda i: 160 + 6 * i
        for i in range(4):
            k(f"buffer_load_dwordx4 {V(HD(i),4)}, v2, s[12:15], s42 offen offset:{1024*i}")
            k(f"buffer_load_dwordx2 {V(HD(i)+4,2)}, v2, s[12:15], s42 offen offset:{1024*i+16}")
        k(f"s_mul_i32 s41, s3, {CONVW}\ns_add_u32 s41, s41, {CONVB}\ns_add_u32 s43, s41, 16640\ns_mov_b32 m0, s43")
        for i in range(4): k(f"buffer_load_dwordx4 v2, s[8:11], s44 offen offset:{1024*i} lds", tag="u")
        for f in stage_loads(0): f()
        cs_loads()
        s1 = stage_loads(1)
        cb, cm = conv_streams(k)
        merge(k, cb, s1, 6, 1)
        gemm(cm)
        k.hazard_flush()
        k.i(f"s_branch {L}_JOIN")
        k.label(f"{L}_NOCONV"); k.restore(st0); k.nst = nst0
    for f in stage_loads(0): f()
    cs_loads()
    for f in stage_loads(1): f()
    k.wait(lg=0)
    gemm(None)
    k.hazard_flush()
    k.label(f"{L}_JOIN")
    k.stamp("gemm_done")
    CSQ, CSK = 56, 84
    for mt in range(7):
        k(f"ds_read_b128 {V(CSQ+4*mt,4)}, v7 offset:{64*mt}\nds_read_b128 {V(CSK+4*mt,4)}, v7 offset:{64*mt+16}")
    k.barrier(lg=False)
    k.hazard_flush()
    st1 = k.save(); nst1 = getattr(k, "nst", 0)
    k("s_cmp_eq_u32 s3, 0")
    k.i(f"s_cbranch_scc0 {L}_B")
    post(k, L + "A", 3, layer)
    k.label(f"{L}_B"); k.restore(st1); k.nst = nst1
    post(k, L + "B", 2, layer)
    k.label(f"{L}_END")
    k.i("s_endpgm")
    return k

def post(k, L, NT, layer):
    conv = layer == 0; final = layer == 1
    xoff = OFF_XF0 if layer == 0 else OFF_XF2
    CSQ, CSK = 56, 84
    Q, K_ = ACC(0, 0), ACC(1, 0)
    EP, EN, TMP = 112, 130, 148
    P, VV = 216, 100
    m, rs, sc = 252, 254, 158
    wo = wo_loads(k, [2]) if NT == 3 else []
    s_pre = []
    for e in list(range(18, 28)) + list(range(18)): s_pre.append(f"v_permlane16_swap_b32 v{Q+e}, v{K_+e}")
    for nt in range(2):
        s_pre.append(f"v_cndmask_b32 v{m+nt}, 0, v{SQ(nt)}, s[52:53]")
        for r in range(1, 4): s_pre.append(f"v_cndmask_b32 v{m+nt}, v{m+nt}, v{SQ(nt)+r}, s[{52+2*r}:{53+2*r}]")
    s_pre += [f"v_permlane16_swap_b32 v{m}, v{m+1}", f"v_add_f32 v{rs}, v{m}, v{m+1}", f"v_mov_b32 v{rs+1}, v{rs}", f"v_permlane32_swap_b32 v{rs}, v{rs+1}",
              f"v_add_f32 v{rs}, v{rs}, v{rs+1}",
              f"v_mul_f32 v{m}, s32, v{Q+27}", f"v_mul_f32 v{m+1}, v{m}, v{m}", f"v_fma_f32 v{rs}, v{rs}, s32, -v{m+1}",
              f"v_max_f32 v{rs}, 0, v{rs}", f"v_add_f32 v{rs}, s33, v{rs}", f"v_rsq_f32 v{rs}, v{rs}"]
    tq = lambda R, C, q: f"v_pk_fma_f32 {V(R+2*q,2)}, {V(C+2*q,2)}, {V(m,2)}, {V(R+2*q,2)} op_sel_hi:[1,0,1] neg_lo:[0,1,0] neg_hi:[0,1,0]"
    for q in range(14): s_pre.append(tq(K_, CSK, q))
    for q in range(14): s_pre.append(tq(Q, CSQ, q))
    s_pre += [f"v_mul_f32 v{sc}, s34, v{rs}", f"v_mul_f32 v{sc+1}, s34, v{rs}"]
    s_k = []
    for q in range(5):
        s_k += [f"v_pk_mul_f32 {V(Q+18+2*q,2)}, {V(Q+18+2*q,2)}, {V(rs,2)} op_sel_hi:[1,0]", f"v_pk_mul_f32 {V(K_+18+2*q,2)}, {V(K_+18+2*q,2)}, {V(rs,2)} op_sel_hi:[1,0]"]
    vsrc = [Q + 18 + i for i in range(9)] + [K_ + 18 + i for i in range(9)]
    for q in range(9): s_k.append(f"v_cvt_pk_bf16_f32 v{VV+q}, v{vsrc[2*q]}, v{vsrc[2*q+1]}")
    s_k += [f"v_mov_b32 v{VV+9}, 0x3f80", f"v_mov_b32 v{P+18}, 0", f"v_mov_b32 v{P+19}, 0"]
    s_k += [f"ds_write_b128 v12, {V(VV,4)}", f"ds_write_b128 v12, {V(VV+4,4)} offset:16", f"ds_write_b64 v12, {V(VV+8,2)} offset:32"]
    s_k += softmax_stream(K_, P, EP, EN, sc, TMP)
    s_k += [f"ds_write_b128 v11, {V(P+4*q,4)} offset:{16*q}" for q in range(5)]
    merge(k, s_pre, wo, 4, 1)
    merge(k, s_k, [])
    k.stamp("k_done")
    k.barrier()
    KA = 16
    for ks in range(4):
        for h in range(2): k(f"ds_read_b64_tr_b16 {V(KA+4*ks+2*h,2)}, v238 offset:{1536*ks + 192*h}")
        for ft in range(3):
            for h in range(2): k(f"ds_read_b64_tr_b16 {V(KA+16+12*ks+4*ft+2*h,2)}, v239 offset:{2560*ks + 320*h + 32*ft}")
    KD = 84
    for ks in range(4):
        for ft in range(3):
            c = "0" if ks == 0 else V(KD+4*ft, 4)
            k(f"v_mfma_f32_16x16x32_bf16 {V(KD+4*ft,4)}, {V(KA+4*ks,4)}, {V(KA+16+12*ks+4*ft,4)}, {c}")
    sm_q = softmax_stream(Q, P, EP, EN, sc, TMP)
    merge(k, sm_q[:10], [])
    for ft in range(2):
        for r in range(4): k(f"ds_write_b32 v240, v{KD+4*ft+r} offset:{160*r + 64*ft}")
    k("s_mov_b32 exec_lo, 0x00ff00ff\ns_mov_b32 exec_hi, 0x00ff00ff")
    for r in range(4): k(f"ds_write_b32 v240, v{KD+8+r} offset:{160*r + 128}")
    k("s_mov_b64 exec, -1")
    for i in range(3): k(f"ds_read_b128 {V(16+4*i,4)}, v241 offset:{1024*i}")
    merge(k, sm_q[10:20], [])
    for r in range(12): k(f"v_min_u32 v{16+r}, -2, v{16+r}")
    k("s_cmp_eq_u32 s49, 0\ns_cselect_b32 exec_hi, -1, 0xff")
    k(f"buffer_store_dwordx4 v[16:19], v2, s[8:11], s51 offen{SC1}")
    k("s_cselect_b32 s51, s51, 0x7ff00000\ns_mov_b32 exec_hi, -1")
    k(f"buffer_store_dwordx4 v[20:23], v2, s[8:11], s51 offen offset:1024{SC1}")
    k("s_mov_b32 exec_hi, 0")
    k(f"buffer_store_dwordx4 v[24:27], v2, s[8:11], s51 offen offset:2048{SC1}")
    k("s_mov_b32 exec_hi, -1")
    k.stamp("part")
    if NT == 2:
        k("s_lshl_b32 s6, s20, 1\ns_add_u32 s6, s6, s3\ns_sub_u32 s6, s6, 2\ns_cmp_lt_u32 s3, 2\ns_cselect_b32 s7, 99, s6\ns_cmp_ge_u32 s7, 25")
        k.hazard_flush()
        stR = k.save()
        k.i(f"s_cbranch_scc1 {L}_NORED")
        k(f"v_mul_u32_u24 v48, 6400, v4\nv_lshl_add_u32 v48, v3, 4, v48\ns_mul_i32 s7, s21, 102400\ns_lshl_b32 s35, s6, 8\ns_add_u32 s7, s7, s35\ns_add_u32 s7, s7, {OFF_PART}")
        for i in range(1, 4): k(f"v_add_u32 v{48+i}, {25600*i}, v48")
        poll(k, f"{L}_RP", [f"buffer_load_dwordx4 {V(32+0,4) if False else V(28+4*i,4)}, v{48+i}, s[8:11], s7 offen sc1" for i in range(4)], list(range(28, 44)), 52, first=SLP('SL_RED', 10), sleep=SLP('SL_B', 3))
        k("v_pk_add_f32 v[28:29], v[28:29], v[32:33]\nv_pk_add_f32 v[30:31], v[30:31], v[34:35]\nv_pk_add_f32 v[36:37], v[36:37], v[40:41]\nv_pk_add_f32 v[38:39], v[38:39], v[42:43]")
        k("v_pk_add_f32 v[28:29], v[28:29], v[36:37]\nv_pk_add_f32 v[30:31], v[30:31], v[38:39]")
        for sw in ("v_permlane16_swap_b32", "v_permlane32_swap_b32"):
            for r in range(4): k(f"v_mov_b32 v{32+r}, v{28+r}")
            for r in range(4): k(f"{sw} v{28+r}, v{32+r}")
            k("v_pk_add_f32 v[28:29], v[28:29], v[32:33]\nv_pk_add_f32 v[30:31], v[30:31], v[34:35]")
        k("v_cvt_pk_bf16_f32 v32, v28, v29\nv_cvt_pk_bf16_f32 v33, v30, v31\nv_min_u32 v32, -2, v32\nv_min_u32 v33, -2, v33")
        k(f"v_lshlrev_b32 v34, 3, v3\ns_lshl_b32 s35, s21, 12\ns_lshl_b32 s6, s6, 7\ns_add_u32 s35, s35, s6\ns_add_u32 s35, s35, {OFF_KVF + layer*KVF_STRIDE}\ns_mov_b64 exec, 0xffff")
        k("buffer_store_dwordx2 v[32:33], v34, s[8:11], s35 offen sc1")
        k("s_mov_b64 exec, -1")
        if layer == 0:
            for r in range(4): k(f"v_mov_b32 v{36+r}, -1")
            for i in range(4): k(f"buffer_store_dwordx4 v[36:39], v{48+i}, s[8:11], s7 offen")
        k.hazard_flush()
        k.label(f"{L}_NORED"); k.restore_mem(stR)
    k.stamp("red")
    merge(k, sm_q[20:], [])
    k.stamp("q_done")
    if conv:
        k("s_cmp_eq_u32 s48, 0")
        k.hazard_flush()
        stC = k.save()
        k.i(f"s_cbranch_scc1 {L}_NOCE")
        conv_epi(k)
        k.hazard_flush()
        k.label(f"{L}_NOCE"); k.restore_mem(stC)
    if NT == 2:
        k("s_cmp_eq_u32 s3, 1")
        k.hazard_flush()
        stK = k.save()
        k.i(f"s_cbranch_scc0 {L}_NOKP")
        k(f"s_lshl_b32 s35, s21, 12\ns_add_u32 s35, s35, {OFF_KVF + layer*KVF_STRIDE}\nv_mov_b32 v172, 0\nv_mov_b32 v173, 0\nv_mov_b32 v174, 0\nv_mov_b32 v175, 0")
        k("s_lshl_b32 s6, s20, 7\ns_add_u32 s6, s6, s35")
        poll(k, f"{L}_KQ", ["buffer_load_dword v160, v2, s[8:11], s6 offen sc1"], [160], 0, pre="s_mov_b64 exec, 1", post="s_mov_b64 exec, -1", first=SLP('SL_KV', 8), sleep=SLP('SL_B', 3))
        ld = [f"buffer_load_dwordx4 {V(160+4*i,4)}, v2, s[8:11], s35 offen offset:{1024*i} sc1" for i in range(3)]
        ld.append(["s_mov_b64 exec, 0xff", "buffer_load_dwordx4 v[172:175], v2, s[8:11], s35 offen offset:3072 sc1", "s_mov_b64 exec, -1"])
        poll(k, f"{L}_KP", ld, list(range(160, 176)), 176, sleep=SLP('SL_B', 3))
        for i in range(3): k(f"ds_write_b128 v243, {V(160+4*i,4)} offset:{1024*i}")
        k("s_mov_b64 exec, 0xff\nds_write_b128 v243, v[172:175] offset:3072\ns_mov_b64 exec, -1")
        k.wait(lg=0)
        k.hazard_flush()
        k.label(f"{L}_NOKP"); k.restore_mem(stK)
    k.barrier()
    k.stamp("kvf")
    OAF = lambda t, ks: 16 + (t * 5 + ks) * 4
    OD = 116
    for t in (4, 0, 1, 2, 3):
        for ks in range(5): k(f"ds_read_b128 {V(OAF(t,ks),4)}, v242 offset:{320*t + 16*ks}")
    for t in (4, 0, 1, 2, 3):
        for ks in range(5):
            c = "0" if ks == 0 else V(OD + 4 * t, 4)
            k(f"v_mfma_f32_16x16x32_bf16 {V(OD+4*t,4)}, {V(OAF(t,ks),4)}, {V(P+4*ks,4)}, {c}")
    k(f"v_add_f32 v{OD+18}, 0x358637bd, v{OD+18}\nv_rcp_f32 v{OD+18}, v{OD+18}")
    OP = 136
    for q in [8] + list(range(8)):
        k(f"v_pk_mul_f32 {V(OD+2*q,2)}, {V(OD+2*q,2)}, {V(OD+18,2)} op_sel_hi:[1,0]")
        k(f"v_cvt_pk_bf16_f32 v{OP+q}, v{OD+2*q}, v{OD+2*q+1}")
    k(f"buffer_store_dwordx4 {V(OP,4)}, v13, s[8:11], s50 offen sc1\nbuffer_store_dwordx4 {V(OP+4,4)}, v13, s[8:11], s50 offen offset:256 sc1")
    k(f"buffer_store_dword v{OP+8}, v14, s[8:11], s38 offen sc1")
    k.stamp("o_st")
    XR = lambda t: 176 + 4 * t
    YG = lambda t: 188 + 4 * t
    k("v_and_b32 v9, 1, v4\nv_mul_u32_u24 v9, 18432, v9\nv_lshrrev_b32 v10, 1, v4\nv_lshl_add_u32 v9, v10, 8, v9\nv_lshl_add_u32 v9, v3, 4, v9")
    k(f"s_mul_i32 s31, s60, 36864\ns_lshl_b32 s4, s63, 9\ns_add_u32 s31, s31, s4\ns_add_u32 s30, s31, {xoff}")
    k("v_lshrrev_b32 v10, 2, v1\nv_lshlrev_b32 v10, 12, v10\nv_and_b32 v11, 3, v1\nv_lshl_add_u32 v10, v11, 4, v10")
    k(f"s_lshl_b32 s39, s63, 16\ns_lshl_b32 s4, s60, 6\ns_add_u32 s39, s39, s4\ns_add_u32 s39, s39, {OFF_YT}")
    k(f"s_lshl_b32 s4, s20, 2\ns_add_u32 s4, s4, s3\ns_lshl_b32 s4, s4, 7\ns_lshl_b32 s5, s21, 2\ns_add_u32 s4, s4, s5\ns_add_u32 s4, s4, {OFF_FLO + layer*FLO_STRIDE}\nv_mov_b32 v15, 0\nv_lshlrev_b32 v8, 2, v1")
    k.wait(vm=0)
    k("s_mov_b64 exec, 1")
    k("buffer_store_dword v15, v15, s[8:11], s4 offen sc1")
    if conv:
        k(f"s_lshl_b32 s5, s40, 2\ns_add_u32 s5, s5, {OFF_FLY}\ns_cmp_eq_u32 s48, 0\ns_cselect_b32 s5, 0x7ff00000, s5")
        k("buffer_store_dword v15, v15, s[8:11], s5 offen sc1")
    k("s_mov_b64 exec, -1")
    k.stamp("o_flag")
    for t in range(NT): k(f"buffer_load_dwordx4 {V(XR(t),4)}, v9, s[8:11], s30 offen offset:{512*t}")
    def y_loads():
        for t in range(NT):
            k(f"buffer_load_dwordx4 {V(YG(t),4)}, v10, s[8:11], s39 offen" + (" sc1" if conv else ""))
            if t < NT - 1: k("s_add_u32 s39, s39, 65536")
    if not conv: y_loads()
    k(f"s_lshl_b32 s4, s60, 7\ns_add_u32 s4, s4, {OFF_FLO + layer*FLO_STRIDE}")
    k(f"s_mul_i32 s5, s60, 36864\ns_mul_i32 s6, s3, 9216\ns_add_u32 s5, s5, s6\ns_add_u32 s5, s5, {OFF_OB + layer*OB_STRIDE}\ns_add_u32 s7, s5, 4096\ns_add_u32 s35, s5, 8192\nv_add_u32 v11, s6, v2")
    if NT == 2:
        k("s_cmp_eq_u32 s3, 1")
        k.hazard_flush()
        stO = k.save()
        k.i(f"s_cbranch_scc0 {L}_NOOP")
        poll(k, f"{L}_OP", ["buffer_load_dword v234, v8, s[8:11], s4 offen sc1"], [234], 0, pre="s_mov_b64 exec, 0xffff", post="s_mov_b64 exec, -1", first=SLP('SL_O', 4), sleep=SLP('SL_B', 3))
        k.hazard_flush()
        k.label(f"{L}_NOOP"); k.restore_mem(stO)
    k.barrier(lg=False)
    k.stamp("o_seen")
    for i in range(9): k(f"buffer_load_dwordx4 {V(16+4*i,4)}, v2, s[8:11], s{(5,7,35)[i//4]} offen offset:{1024*(i%4)} sc1")
    if conv:
        k(f"s_lshl_b32 s4, s63, 6\ns_add_u32 s4, s4, {OFF_FLY}")
        msk = "s_mov_b64 exec, 0xffffffff" if NT == 2 else "s_mov_b32 exec_hi, 0xffff"
        poll(k, f"{L}_YP", ["buffer_load_dword v234, v8, s[8:11], s4 offen sc1"], [234], 0, pre=msk, post="s_mov_b64 exec, -1")
        y_loads()
    for i in range(9): k(f"ds_write_b128 v11, {V(16+4*i,4)} offset:{OIMG + 1024*i}")
    k.barrier()
    k.stamp("oimg")
    OB = lambda b, nt: 108 + 8 * b + 4 * nt
    AC = lambda t, nt: 124 + 8 * t + 4 * nt
    def b_reads(s): return [f"ds_read_b128 {V(OB(s&1,nt),4)}, v2 offset:{OIMG + 18432*nt + 1024*s}" for nt in range(2)]
    for t in b_reads(0): k(t)
    YR = lambda t: 148 + 4 * t
    for s in range(18):
        fill = b_reads(s + 1) if s < 17 else []
        for t in range(NT):
            for nt in range(2):
                c = "0" if s == 0 else V(AC(t, nt), 4)
                k(f"v_mfma_f32_16x16x32_bf16 {V(AC(t,nt),4)}, {A(WA(t,s),4)}, {V(OB(s&1,nt),4)}, {c}")
                if fill: k(fill.pop(0))
        if s == 8:
            k(f"s_lshl_b32 s4, s62, 10\ns_add_u32 s4, s4, {YL}\nv_add_u32 v11, s4, v2")
            k("v_lshrrev_b32 v12, 1, v4\nv_lshlrev_b32 v12, 3, v12\nv_lshrrev_b32 v13, 2, v3\nv_add_u32 v12, v12, v13\nv_lshlrev_b32 v12, 6, v12")
            k(f"v_and_b32 v13, 1, v4\nv_lshl_add_u32 v12, v13, 5, v12\nv_and_b32 v13, 3, v3\nv_lshl_add_u32 v12, v13, 3, v12\nv_add_u32 v12, s4, v12")
            for t in range(NT): k(f"ds_write_b128 v11, {V(YG(t),4)} offset:{1024*t}")
        if s == 10:
            for t in range(NT):
                for q in range(2): k(f"ds_read_b64_tr_b16 {V(YR(t)+2*q,2)}, v12 offset:{1024*t + 256*q}")
        if s == 12:
            k("v_and_b32 v6, 31, v1\nv_lshrrev_b32 v7, 5, v1\ns_mov_b32 s69, 0xffff0000")
            k(f"v_lshlrev_b32 v13, 3, v6\nv_add_u32 v14, {STAT}, v13\ns_lshl_b32 s4, s3, 8\nv_add_u32 v15, s4, v14")
            k(f"s_lshl_b32 s5, s60, 10\ns_add_u32 s5, s5, {OFF_ST + layer*ST_STRIDE}\ns_lshl_b32 s6, s61, 8")
            k("v_add_u32 v234, s61, v7\nv_add_u32 v232, 1, v234\nv_and_b32 v232, 3, v232\nv_lshl_add_u32 v232, v232, 8, v13")
            k("v_add_u32 v233, 3, v234\nv_and_b32 v233, 3, v233\nv_lshl_add_u32 v233, v233, 8, v13")
        if s == 14:
            for t in range(NT):
                for q in range(4): k(f"v_lshlrev_b32 v{52+8*t+2*q}, 16, v{XR(t)+q}\nv_and_b32 v{52+8*t+2*q+1}, s69, v{XR(t)+q}")
    k.stamp("proj")
    for t in range(NT):
        for r in range(4): k(f"v_permlane16_swap_b32 v{AC(t,0)+r}, v{AC(t,1)+r}")
        for q in range(4): k(f"v_pk_add_f32 {V(AC(t,0)+2*q,2)}, {V(AC(t,0)+2*q,2)}, {V(52+8*t+2*q,2)}")
    S1, S2 = 168, 170
    first = True
    for t in range(NT):
        for q in range(4):
            x = V(AC(t, 0) + 2 * q, 2)
            if first:
                k(f"v_pk_mul_f32 {V(S2,2)}, {x}, {x}\nv_pk_add_f32 {V(S1,2)}, {x}, {V(AC(t,0)+2,2)}")
                first = False
            else:
                k(f"v_pk_fma_f32 {V(S2,2)}, {x}, {x}, {V(S2,2)}")
                if not (t == 0 and q == 1): k(f"v_pk_add_f32 {V(S1,2)}, {V(S1,2)}, {x}")
    k(f"v_add_f32 v{S1}, v{S1}, v{S1+1}\nv_add_f32 v{S1+1}, v{S2}, v{S2+1}")
    k(f"v_mov_b32 v{S2}, v{S1}\nv_mov_b32 v{S2+1}, v{S1+1}")
    k(f"v_permlane32_swap_b32 v{S1}, v{S2}\nv_permlane32_swap_b32 v{S1+1}, v{S2+1}")
    k(f"v_pk_add_f32 {V(S1,2)}, {V(S1,2)}, {V(S2,2)}")
    k(f"ds_write_b64 v15, {V(S1,2)}")
    k.barrier()
    if NT == 3:
        for w in range(4): k(f"ds_read_b64 {V(224+2*w,2)}, v14 offset:{256*w}")
        k("v_pk_add_f32 v[224:225], v[224:225], v[226:227]\nv_pk_add_f32 v[228:229], v[228:229], v[230:231]\nv_pk_add_f32 v[224:225], v[224:225], v[228:229]")
        k("v_min_u32 v225, -2, v225\ns_add_u32 s6, s5, s6\ns_mov_b64 exec, 0xffffffff")
        k("buffer_store_dwordx2 v[224:225], v13, s[8:11], s6 offen sc1")
        k("s_mov_b64 exec, -1")
    YU = 200
    for t in range(NT):
        for q in range(4): k(f"v_lshlrev_b32 v{YU+8*t+2*q}, 16, v{YR(t)+q}\nv_and_b32 v{YU+8*t+2*q+1}, s69, v{YR(t)+q}")
    if final:
        k("v_and_b32 v9, 1, v4\nv_lshl_add_u32 v9, v9, 4, v3\nv_mul_u32_u24 v9, 1152, v9\nv_lshrrev_b32 v10, 1, v4\nv_lshl_add_u32 v9, v10, 4, v9")
        k("s_mul_i32 s30, s60, 36864\ns_lshl_b32 s4, s63, 5\ns_add_u32 s30, s30, s4")
    else:
        k(f"s_add_u32 s30, s31, {OFF_XF2}")
    if NT == 3:
        poll(k, f"{L}_SP", ["buffer_load_dwordx2 v[236:237], v232, s[8:11], s5 offen sc1", "buffer_load_dwordx2 v[238:239], v233, s[8:11], s5 offen sc1"], [237, 239], 234, first=SLP('SL_S', 6), sleep=SLP('SL_B', 3))
        k("v_pk_add_f32 v[236:237], v[236:237], v[238:239]")
        k("v_mov_b32 v238, v236\nv_mov_b32 v239, v237")
        k("v_permlane32_swap_b32 v236, v238\nv_permlane32_swap_b32 v237, v239")
        k("v_pk_add_f32 v[236:237], v[236:237], v[238:239]")
        k("v_mul_f32 v236, s32, v236\nv_mul_f32 v238, v236, v236\nv_fma_f32 v237, v237, s32, -v238\nv_max_f32 v237, 0, v237\nv_add_f32 v237, s33, v237\nv_rsq_f32 v237, v237")
        k("v_mul_f32 v236, v236, v237")
        k("ds_write_b64 v14, v[236:237]")
        k.barrier()
    else:
        k.barrier()
        k("ds_read_b64 v[236:237], v14")
    k.stamp("stats")
    for t in range(NT):
        for q in range(4):
            x = V(AC(t, 0) + 2 * q, 2); tt = V(240 + 2 * q, 2)
            k(f"v_pk_fma_f32 {tt}, {x}, v[236:237], v[236:237] op_sel:[0,1,0] op_sel_hi:[1,1,0] neg_lo:[0,0,1] neg_hi:[0,0,1]")
            k(f"v_pk_fma_f32 {x}, {tt}, {V(YU+8*t+2*q,2)}, {x}")
        for q in range(4): k(f"v_cvt_pk_bf16_f32 v{XR(t)+q}, v{AC(t,0)+2*q}, v{AC(t,0)+2*q+1}")
        if final: k(f"buffer_store_dwordx4 {V(XR(t),4)}, v9, s[12:15], s30 offen offset:{32*t}")
        else: k(f"buffer_store_dwordx4 {V(XR(t),4)}, v9, s[8:11], s30 offen offset:{512*t}{SC1}")
    if k.stamps_on:
        k.wait(vm=0)
        k.stamp_dump(k.stamp_off, 16)
    k.i("s_endpgm")

CAW, CAZ, CAA, CAB = 224, 225, 226, 227
CACC = 224
def conv_streams(k):
    HD = lambda i: 160 + 6 * i
    b = []
    T0 = 184
    AW, AZ, AA, AB = CAW, CAZ, CAA, CAB
    b += [f"v_add_u32 v{AW}, s41, v2", f"v_lshlrev_b32 v{AZ}, 3, v1", f"v_add_u32 v{AZ}, s43, v{AZ}"]
    b += [f"v_add_u32 v{AA}, 1, v3", f"v_and_b32 v{AB}, 3, v{AA}", f"v_and_b32 v{AA}, 0x1c, v{AA}", f"v_lshl_add_u32 v{AA}, v4, 3, v{AA}", f"v_lshlrev_b32 v{AA}, 1, v{AA}",
          f"v_mul_u32_u24 v{AB}, 4160, v{AB}", f"v_add3_u32 v{AA}, v{AA}, v{AB}, s41"]
    b += [f"v_lshlrev_b32 v{T0}, 5, v3", f"v_lshlrev_b32 v{AB}, 4, v4", f"v_sub_u32 v{AB}, v{AB}, v{T0}", "s_add_u32 s47, s43, 480", f"v_add_u32 v{AB}, s47, v{AB}"]
    Z = T0 + 12
    b += [f"v_mov_b32 v{Z+r}, 0" for r in range(4)]
    b += [f"ds_write_b64 v{AZ}, {V(Z,2)} offset:4096"]
    for i in range(4):
        d = HD(i)
        b.append(f"ds_write_b128 v{AW}, {V(d,4)} offset:{32 + 1024*i}")
        for q in range(4): b.append(f"v_alignbit_b32 v{T0+q}, v{d+q+1}, v{d+q}, 16")
        b.append(f"ds_write_b128 v{AW}, {V(T0,4)} offset:{32 + 4160 + 1024*i}")
        for q in range(4): b.append(f"v_mov_b32 v{T0+4+q}, v{d+q+1}")
        b.append(f"ds_write_b128 v{AW}, {V(T0+4,4)} offset:{32 + 2*4160 + 1024*i}")
        for q in range(4): b.append(f"v_alignbit_b32 v{T0+8+q}, v{d+q+2}, v{d+q+1}, 16")
        b.append(f"ds_write_b128 v{AW}, {V(T0+8,4)} offset:{32 + 3*4160 + 1024*i}")
        if i == 0:
            E = T0 + 16
            g = ["s_mov_b64 exec, 1"]
            g += [f"ds_write_b128 v{AW}, {V(Z,4)} offset:{4160*r}" for r in range(4)]
            g += [f"ds_write_b128 v{AW}, {V(Z,4)} offset:16"]
            g += [f"v_mov_b32 v{E}, 0", f"v_mov_b32 v{E+1}, 0", f"v_mov_b32 v{E+2}, 0", f"v_lshlrev_b32 v{E+3}, 16, v{d}", f"ds_write_b128 v{AW}, {V(E,4)} offset:{4160+16}"]
            g += [f"v_mov_b32 v{E+4}, 0", f"v_mov_b32 v{E+5}, 0", f"v_mov_b32 v{E+6}, 0", f"v_mov_b32 v{E+7}, v{d}", f"ds_write_b128 v{AW}, {V(E+4,4)} offset:{2*4160+16}"]
            g += [f"v_mov_b32 v{Z+2}, v{E+3}", f"v_mov_b32 v{Z+3}, v{T0}", f"ds_write_b128 v{AW}, {V(Z,4)} offset:{3*4160+16}", "s_mov_b64 exec, -1"]
            b.append(g)
    b.append(["s_and_b32 s45, s40, 1", "s_cmp_eq_u32 s45, 0", "s_cselect_b32 s45, 16, 0", "s_lshl_b32 s46, s46, s45", "s_and_b32 s46, s46, 0xffff0000"])
    b.append(lambda: k.wait_tag("u"))
    def reads(rho):
        bb = 64 + 64 * (rho & 1)
        out = []
        for j in range(8):
            s = rho + 8 * j
            out.append(f"ds_read_b64 {A(bb+4*j,2)}, v{AA} offset:{64*s}")
            out.append(f"ds_read_b64 {A(bb+4*j+2,2)}, v{AA} offset:{64*s+8}")
            out.append(f"ds_read_b128 {A(bb+32+4*j,4)}, v{AB} offset:{3584 - 64*(8*j - rho)}")
        return out
    b += reads(0)
    m = []
    pairs = sorted([(sg, tau) for sg in range(8) for tau in range(8) if sg + tau <= 7], key=lambda p: (max(p), p))
    seen = set()
    for rho in range(8):
        bb = 64 + 64 * (rho & 1)
        fill = reads(rho + 1) if rho < 7 else []
        for n, (sg, tau) in enumerate(pairs):
            c8 = sg + tau
            acc = A(CACC + 4 * c8, 4)
            c = acc if c8 in seen else "0"
            seen.add(c8)
            it = [f"v_mfma_f32_16x16x32_bf16 {acc}, {A(bb+4*sg,4)}, {A(bb+32+4*tau,4)}, {c}"]
            if fill and n >= 8: it.append(fill.pop(0))
            m.append(it)
        assert not fill
    return b, m

def conv_epi(k):
    AU, AY, U, T0 = 48, 49, 16, 32
    k(f"v_lshlrev_b32 v{AU}, 5, v3\nv_lshl_add_u32 v{AY}, v4, 3, v{AU}\ns_add_u32 s47, s43, 504\nv_sub_u32 v{AU}, s47, v{AY}")
    for c8 in range(8): k(f"ds_read_b64 {V(U+2*c8,2)}, v{AU} offset:{3584 - 512*c8}")
    k(f"s_add_u32 s44, s42, {OFF_YT}\ns_mov_b32 s47, 0xffff0000")
    for c8 in range(8):
        u = U + 2 * c8; t = T0 + 8 * (c8 & 1); a = t + 4
        for r in range(4): k(f"v_accvgpr_read_b32 v{a+r}, a{CACC+4*c8+r}")
        k(f"v_and_b32 v{t}, s47, v{u+1}\nv_lshlrev_b32 v{t+1}, 16, v{u+1}\nv_and_b32 v{t+2}, s47, v{u}\nv_lshlrev_b32 v{t+3}, 16, v{u}")
        for r in range(4): k(f"v_fmac_f32 v{a+r}, s46, v{t+r}")
        k(f"v_cvt_pk_bf16_f32 v{u}, v{a}, v{a+1}\nv_cvt_pk_bf16_f32 v{u+1}, v{a+2}, v{a+3}")
        k(f"buffer_store_dwordx2 {V(u,2)}, v{AY}, s[8:11], s44 offen offset:{512*c8}{SC1}")
```

```python
S, D, H, DH = 2048, 576, 32, 18
OFF_WQ  = 0x000000
OFF_CS  = 0x1F8000
OFF_WO  = 0x204000
OFF_UT  = 0x2A8000
OFF_YT  = 0x4E8000
OFF_XF0 = 0x728000
OFF_XF2 = 0x968000
OFF_OB  = 0xBA8000
OB_STRIDE = 0x240000
OFF_SEN = 0x1028000
OFF_PART = OFF_SEN
OFF_KVF = OFF_PART + 0x190000
KVF_STRIDE = 0x10000
OFF_ST  = OFF_KVF + 2 * KVF_STRIDE
ST_STRIDE = 0x10000
OFF_FLO = OFF_ST + 2 * ST_STRIDE
FLO_STRIDE = 0x2000
OFF_FLY = OFF_FLO + 2 * FLO_STRIDE
SEN_END = OFF_FLY + 0x1000
SEN_SIZE = SEN_END - OFF_SEN
WS_SIZE = SEN_END
WQ_HP = 129024
XBYTES = S * D * 2
assert SEN_SIZE % 1024 == 0
```

```python
import sys
from asmgen import *
from layout import *
import k0, kl
HEADER = open("interleave_layers__linear_kernel_hedgehog__ssm_conv_h3__prompt.s.ref").read().split("; Override launch")[0]
def build(kernels, launches, path):
    out = [HEADER.rstrip("\n")]
    for (name, grid, block, lds) in launches:
        out.append(f"; @launch kernel={name} grid=({grid},1,1) block=({block},1,1) lds={lds}")
    out.append('.amdgcn_target "amdgcn-amd-amdhsa--gfx950"')
    out.append(".text")
    for k in kernels: out.append(k.text())
    out.append('.section .rodata,"a"')
    for k in kernels: out.append(k.desc())
    open(path, "w").write("\n".join(out))
    for k in kernels: print(k.name, "ins", k.nins, "v", k.maxv + 1, "a", k.maxa + 1, "s", k.maxs + 1)
DBG = 0x2000000
def full(st=False):
    sp = (lambda i: DBG + i * 0x20000) if st else (lambda i: None)
    ks = [k0.gen_k0(sp(0)), kl.gen_layer("l1_kernel", 0, sp(1)), kl.gen_layer("l2_kernel", 1, sp(2))]
    ls = [("k0_kernel", k0.K0_GRID, 256, k0.K0_LDS), ("l1_kernel", 256, 256, kl.KL_LDS), ("l2_kernel", 256, 256, kl.KL_LDS)]
    return ks, ls
if __name__ == "__main__":
    ks, ls = full()
    build(ks, ls, sys.argv[1] if len(sys.argv) > 1 else "t3.s")
    ks, ls = full(True)
    build(ks, ls, "t3s.s")
    import json
    json.dump({k.name: getattr(k, "stnames", []) for k in ks}, open("t3s.json", "w"))
```
